```python
import torch

def _softmax(x, axis=-1):
    return torch.softmax(x, dim=axis)
def _gelu(x):
    return torch.nn.functional.gelu(x, approximate="tanh")
def _silu(x):
    return torch.nn.functional.silu(x)
def _sigmoid(x):
    return torch.sigmoid(x)
def _layernorm(x, axis=-1, eps=1e-5):
    m = x.mean(dim=axis, keepdim=True)
    v = x.var(dim=axis, keepdim=True, unbiased=False)
    return (x - m) / torch.sqrt(v + eps)
def _scatter_add(tgt, idx, src, axis=0):
    return tgt.clone().index_add_(axis, idx, src)
def _segment_sum(src, seg, n):
    out = torch.zeros((n,) + src.shape[1:], dtype=src.dtype)
    return out.index_add_(0, seg, src)
def _pad(x, pw):
    flat = tuple(v for pair in reversed(pw) for v in pair)
    return torch.nn.functional.pad(x, flat)

kernel_name = 'recurrent_scan__compressed_kv_cla__dense_activation_gelu__decode'

def setup_inputs():

    _w = (lambda a: (lambda t: t.to(torch.bfloat16) if t.is_floating_point() else t)(torch.as_tensor(a)))
    def _A_setup():
        B, H, Sq, Sk, D, M = 1, 32, 1, 16384, 128, 576
        Dc = 4 * D
        return {
            "x": _w((lambda *s: torch.randn(*s, dtype=torch.bfloat16) * 0.1)(B, Sq, M)),
            "c_kv": _w((lambda *s: torch.randn(*s, dtype=torch.bfloat16) * 3.2)(B, Sk, Dc)),
            "w_q": _w((lambda *s: torch.randn(*s, dtype=torch.bfloat16) * 0.8)(M, H, D) * (M ** -0.5)),
            "w_uk": _w((lambda *s: torch.randn(*s, dtype=torch.bfloat16) * 0.8)(Dc, H, D) * (Dc ** -0.5)),
            "w_uv": _w((lambda *s: torch.randn(*s, dtype=torch.bfloat16) * 3.2)(Dc, H, D) * (Dc ** -0.5)),
            "w_o": _w((lambda *s: torch.randn(*s, dtype=torch.bfloat16) * 3.2)(H, D, M) * ((H * D) ** -0.5)),
        }
    _A_in = _A_setup()

    def _B_setup():
        B, S, D, F = 1, 1, 576, 4608
        return {
            "x": _w((lambda *s: torch.randn(*s, dtype=torch.bfloat16) * 0.1)(B, S, D)),
            "w1": _w((lambda *s: torch.randn(*s, dtype=torch.bfloat16) * 3.2)(D, F) * (D ** -0.5)),
            "b1": _w((lambda *s: torch.randn(*s, dtype=torch.bfloat16) * 3.2)(F) * 0.01),
            "w2": _w((lambda *s: torch.randn(*s, dtype=torch.bfloat16) * 0.8)(F, D) * (F ** -0.5)),
            "b2": _w((lambda *s: torch.randn(*s, dtype=torch.bfloat16) * 0.8)(D) * 0.01),
        }
    _B_in = _B_setup()

    return {
        "A_x": _A_in["x"],
        "A_c_kv": _A_in["c_kv"],
        "A_w_q": _A_in["w_q"],
        "A_w_uk": _A_in["w_uk"],
        "A_w_uv": _A_in["w_uv"],
        "A_w_o": _A_in["w_o"],
        "B_x": _B_in["x"],
        "B_w1": _B_in["w1"],
        "B_b1": _B_in["b1"],
        "B_w2": _B_in["w2"],
        "B_b2": _B_in["b2"],
    }

def reference(A_x, A_c_kv, A_w_q, A_w_uk, A_w_uv, A_w_o, B_x, B_w1, B_b1, B_w2, B_b2):
    def _A_ref(x, c_kv, w_q, w_uk, w_uv, w_o):
        B, Sq, M = x.shape[0], x.shape[1], x.shape[2]
        Sk = c_kv.shape[1]
        H, D = w_q.shape[1], w_q.shape[2]
        q = torch.einsum("bqm,mhd->bhqd", x, w_q)
        k = torch.einsum("bkc,chd->bhkd", c_kv, w_uk)
        v = torch.einsum("bkc,chd->bhkd", c_kv, w_uv)
        scores = torch.einsum("bhqd,bhkd->bhqk", q, k) * (D ** -0.5)
        off = Sk - Sq
        qi = torch.arange(Sq)[:, None]
        kj = torch.arange(Sk)[None, :]
        cmask = kj <= (qi + off)
        scores = torch.where(cmask[None, None], scores, -1e9)
        p = _softmax(scores, axis=-1)
        ctx = torch.einsum("bhqk,bhkd->bhqd", p, v)
        return torch.einsum("bhqd,hdm->bqm", ctx, w_o)

    def _B_ref(x, w1, b1, w2, b2):
        h = torch.einsum("bsd,df->bsf", x, w1) + b1
        h = _gelu(h)
        return torch.einsum("bsf,fd->bsd", h, w2) + b2

    x = A_x
    xn = _layernorm(x, axis=-1)
    s = _A_ref(xn, A_c_kv, A_w_q, A_w_uk, A_w_uv, A_w_o)
    g = _silu(_B_ref(xn, B_w1, B_b1, B_w2, B_b2))
    return x + s * g
```

```python
import re

TRANS = ("v_exp_f32","v_log_f32","v_rcp_f32","v_rsq_f32","v_sqrt_f32","v_sin_f32","v_cos_f32","v_rcp_iflag_f32")

def regs_of(tok):
    tok = tok.strip()
    tok = tok.lstrip('-')
    if tok.startswith('abs(') or tok.startswith('|'):
        tok = tok.replace('abs(','').replace(')','').replace('|','')
    m = re.fullmatch(r'([vsa])(\d+)', tok)
    if m: return {m.group(1)+m.group(2)}
    m = re.fullmatch(r'([vsa])\[(\d+):(\d+)\]', tok)
    if m: return {m.group(1)+str(i) for i in range(int(m.group(2)), int(m.group(3))+1)}
    if tok in ('vcc','vcc_lo','vcc_hi'): return {'vcc'}
    if tok in ('exec','exec_lo','exec_hi'): return {'exec'}
    if tok == 'm0': return {'m0'}
    return set()

class Ins:
    def __init__(self, text):
        self.text = text
        t = text.split(';')[0].strip()
        parts = t.split(None, 1)
        self.op = parts[0]
        rest = parts[1] if len(parts) > 1 else ''
        ops = []; depth = 0; cur = ''
        for ch in rest:
            if ch in '[(': depth += 1
            if ch in '])': depth -= 1
            if ch == ',' and depth == 0:
                ops.append(cur.strip()); cur = ''
            else: cur += ch
        if cur.strip(): ops.append(cur.strip())
        self.mods = ''
        if ops:
            l = ops[-1].split(None, 1)
            if len(l) > 1 and not ops[-1].startswith('hwreg'):
                ops[-1] = l[0]; self.mods = l[1]
        self.ops = ops
        op = self.op
        self.is_mfma = op.startswith('v_mfma')
        self.is_valu = op.startswith('v_') and not self.is_mfma
        self.is_vmem = op.startswith(('buffer_','global_','flat_'))
        self.is_ds = op.startswith('ds_')
        self.is_salu = op.startswith('s_')
        self.is_trans = any(op.startswith(x) for x in TRANS)
        self.is_dot = op.startswith('v_dot')
        self.is_dpp = '_dpp' in op or 'row_' in self.mods or 'quad_perm' in self.mods
        self.is_perml = op.startswith('v_permlane')
        self.is_rdlane = op.startswith(('v_readlane','v_readfirstlane'))
        self.is_ldsdma = self.is_vmem and re.search(r'\blds\b', self.mods) is not None
        R = [regs_of(o) for o in ops]
        W = set(); S = set()
        self.mA = self.mB = self.mC = self.mD = set()
        self.stdata = set()
        if self.is_mfma:
            self.mD, self.mA, self.mB, self.mC = R[0], R[1], R[2], R[3]
            W = set(R[0]); S = R[1] | R[2] | R[3]
            self.passes = 8 if '32x32' in op else 4
        elif self.is_valu:
            if self.is_perml or op.startswith('v_swap'):
                W = R[0] | R[1]; S = R[0] | R[1]
            elif op.startswith(('v_add_co','v_sub_co','v_addc_co','v_subb_co','v_subrev_co','v_div_scale','v_mad_u64')):
                W = R[0] | R[1]
                for r in R[2:]: S |= r
            else:
                W = set(R[0])
                for r in R[1:]: S |= r
                if op.startswith(('v_fmac','v_dot2c','v_writelane','v_pk_fmac','v_mac')) or self.is_dpp: S |= R[0]
                if op.startswith('v_cndmask') and len(ops) == 3: S |= {'vcc'}
                if op.startswith('v_cmpx'): W |= {'exec'}
        elif self.is_vmem:
            if 'store' in op or ('atomic' in op):
                for r in R: S |= r
                if op.startswith('buffer'): self.stdata = R[0]
                else: self.stdata = R[1]
                if not (op.endswith('x4') or op.endswith('x3')): self.stdata = set()
            elif self.is_ldsdma:
                for r in R: S |= r
                S |= {'m0'}
            else:
                W = set(R[0])
                for r in R[1:]: S |= r
        elif self.is_ds:
            if op.startswith(('ds_read','ds_bpermute','ds_permute','ds_swizzle')) or '_rtn' in op:
                W = set(R[0])
                for r in R[1:]: S |= r
            else:
                for r in R: S |= r
        elif self.is_salu:
            if op.startswith(('s_cmp','s_cbranch','s_branch','s_waitcnt','s_nop','s_barrier','s_sleep','s_setprio','s_endpgm','s_bitcmp')):
                for r in R: S |= r
            else:
                if R: W = set(R[0])
                for r in R[1:]: S |= r
                if 'saveexec' in op: W |= {'exec'}
        self.W = W; self.S = S
        self.states = 1
        if op == 's_nop': self.states = int(ops[0], 0) + 1

def need(prev, cur):
    n = 0
    vW = {r for r in prev.W if r[0] in 'va' and r != 'vcc'}
    sW = {r for r in prev.W if r[0] == 's' or r == 'vcc'}
    if prev.is_valu:
        if cur.is_mfma and vW & cur.S: n = max(n, 2)
        if cur.is_perml and vW & cur.S: n = max(n, 2)
        if cur.is_dpp and vW & cur.S: n = max(n, 2)
        if cur.is_rdlane and vW & cur.S: n = max(n, 1)
        if prev.is_trans and vW & cur.S and not cur.is_trans: n = max(n, 1)
        if sW:
            if cur.is_valu and sW & cur.S: n = max(n, 4 if cur.op.startswith(('v_readlane','v_writelane')) else 2)
            if cur.is_mfma and sW & cur.S: n = max(n, 2)
            if cur.is_vmem and sW & cur.S: n = max(n, 5)
        if prev.is_dot and (vW & (cur.S | cur.W)):
            if cur.op == prev.op:
                srcab = set()
                for o in cur.ops[1:3]: srcab |= regs_of(o)
                if vW & srcab: n = max(n, 3)
            else: n = max(n, 3)
        if 'exec' in prev.W: n = max(n, 5)
        if 'sdwa' in prev.op and vW & (cur.S | cur.W): n = max(n, 1)
    if prev.is_mfma:
        big = {4: 8, 8: 12}[prev.passes]
        if cur.is_mfma:
            if prev.mD & (cur.mA | cur.mB): n = max(n, big)
            if prev.mD & cur.mC and not (prev.mD == cur.mC and prev.passes == cur.passes): n = max(n, big - 2)
            if prev.mD & cur.mD and not (prev.mD == cur.mC): n = max(n, big)
        else:
            if prev.mD & (cur.S | cur.W): n = max(n, big)
            if cur.is_valu and prev.mC & cur.W: n = max(n, big - 5)
    if prev.is_salu and 'm0' in prev.W and cur.is_ldsdma: n = max(n, 1)
    if prev.stdata and prev.stdata & cur.W: n = max(n, 2)
    return n

class Asm:
    def __init__(self):
        self.items = []
        self.uid = 0
    def __call__(self, text):
        for l in text.split('\n'):
            l = l.strip()
            if l: self.items.append(l)
    def label(self, base):
        self.uid += 1
        return f"L_{base}_{self.uid}"
    def finish(self):
        out = []
        hists = [[]]
        pending = {}
        WIN = 24
        def age(h, k): return [(i, d + k) for (i, d) in h if d + k < WIN]
        nnop = 0
        for l in self.items:
            if l.startswith(';') or l.startswith('.'):
                out.append(l); continue
            if re.match(r'^[\w.$]+:$', l):
                lab = l[:-1]
                if lab in pending: hists = hists + pending.pop(lab)
                mm = {}
                for h in hists:
                    for (i, d) in h:
                        if id(i) not in mm or mm[id(i)][1] > d: mm[id(i)] = (i, d)
                hists = [list(mm.values())]
                out.append(l); continue
            ins = Ins(l)
            req = 0
            for h in hists:
                for (p, d) in h:
                    req = max(req, need(p, ins) - d)
            if req > 0:
                nnop += 1
                k = req
                while k > 0:
                    c = min(k, 16)
                    out.append(f"s_nop {c-1}")
                    k -= c
                hists = [age(h, req) for h in hists]
            out.append(l)
            hists = [age(h, ins.states) + [(ins, 0)] for h in hists]
            if ins.op.startswith(('s_cbranch','s_branch')):
                tgt = ins.ops[0]
                pending.setdefault(tgt, []).extend([list(h) for h in hists])
                if ins.op == 's_branch': hists = [[]]
            if ins.op == 's_endpgm': hists = [[]]
        self.nnop = nnop
        return '\n'.join(('' if (x.endswith(':') or x.startswith(('.',';'))) else '    ') + x for x in out) + '\n'
```

```python
import sys, struct
from asmlib import Asm
NAME = "recurrent_scan__compressed_kv_cla__dense_activation_gelu__decode"

def f2u(x): return struct.unpack('<I', struct.pack('<f', x))[0]
def hx(x): return f"0x{x & 0xffffffff:08x}"

class Cfg:
    stamps = False
    mimic = True
    spin_max = 20000
    lspin_max = 400000
    code_prefetch = True
    dma_win = 0
    prio = True

WS_Q = 0x1000; WS_S = 0x11000; WS_Y = 0xA1000; WS_IN = 0x100000; INB = 17408
WS_TS = 0x600000; WS_SIZE = 0x700000
ROW = 1056
L_QF = 135168; L_RED = 135168
L_XN = 153600; L_QP = 156160; L_P3 = 160256; L_PS = 162304; L_HP = 162816
L_QV = 163328; L_S3 = 163584; L_CNT = 163648; L_END = 163712
C_A, C_Q, C_QC, C_L, C_P, C_C, C_H, C_Y, C_D, C_S = [4*k for k in range(10)]
sB, sW, sXCD, sI, sH, sJ = 's2', 's3', 's4', 's5', 's6', 's7'
def srd(n): return f"s[{n}:{n+3}]"
RX, RWS, RWQ, RWUK, RWUV, RWO, RW1, RW2, RB1, RCKV, RB2, ROUT, RCODE = [8+4*k for k in range(13)]
sT = ['s60','s61','s62','s63']
sHH, sP, sU, sQ = 's64','s65','s66','s67'
sA, sBb, sC, sD, sSpin, sTmp = 's68','s69','s70','s71','s72','s73'
sK0, sK1, sK2, sK3 = 's74','s75','s76','s77'
sEX = 's[78:79]'
STAMP0 = 80
VALIDMASK = (0x00ff00ff, 0xff00ff00)

def v(n, k=1): return f"v{n}" if k == 1 else f"v[{n}:{n+k-1}]"

def gen(cfg):
    a = Asm()
    nstamp = [0]
    def stamp(k):
        if cfg.stamps: a(f"s_memrealtime s[{STAMP0+2*k}:{STAMP0+2*k+1}]")
    def flush_stamps(vt, vo, n):
        if not cfg.stamps: return
        a("s_mov_b64 exec, -1\ns_waitcnt lgkmcnt(0)")
        a(f"v_mov_b32 {v(vt)}, 0")
        for k in range(n): a(f"v_writelane_b32 {v(vt)}, s{STAMP0+2*k}, {k}")
        a(f"""s_lshl_b32 {sA}, {sB}, 3
        s_add_u32 {sA}, {sA}, {sW}
        s_lshl_b32 {sA}, {sA}, 6
        s_add_u32 {sA}, {sA}, {WS_TS}
        v_lshlrev_b32 {v(vo)}, 2, v0
        s_mov_b64 exec, 0xffff
        buffer_store_dword {v(vt)}, {v(vo)}, {srd(RWS)}, {sA} offen""")
    def set_exec(lo, hi):
        a(f"s_mov_b32 exec_lo, {hx(lo)}\ns_mov_b32 exec_hi, {hx(hi)}")
    def signal(cnt, vone, vcnt):
        a(f"s_mov_b64 exec, 1\nds_add_u32 {v(vcnt)}, {v(vone)} offset:{cnt}\ns_mov_b64 exec, -1")
    def lwait(cnt, vt, vcnt, sleep=0):
        L = a.label("lw"); D = a.label("lwd")
        a(f"""s_mov_b32 {sSpin}, {cfg.lspin_max}
        {L}:
        ds_read_b32 {v(vt)}, {v(vcnt)} offset:{cnt}
        s_waitcnt lgkmcnt(0)
        v_readfirstlane_b32 {sTmp}, {v(vt)}
        s_cmp_ge_u32 {sTmp}, 4
        s_cbranch_scc1 {D}""")
        if sleep: a(f"s_sleep {sleep}")
        a(f"""s_sub_u32 {sSpin}, {sSpin}, 1
        s_cbranch_scc0 {L}
        {D}:""")
    def xrow(op, r, t):
        a(f"""v_mov_b32 {v(t)}, {v(r)}
        v_permlane16_swap_b32 {v(r)}, {v(t)}
        {op} {v(r)}, {v(r)}, {v(t)}
        v_mov_b32 {v(t)}, {v(r)}
        v_permlane32_swap_b32 {v(r)}, {v(t)}
        {op} {v(r)}, {v(r)}, {v(t)}""")
    def ror(op, r, n):
        a(f"{op}_dpp {v(r)}, {v(r)}, {v(r)} row_ror:{n} row_mask:0xf bank_mask:0xf")
    def allsum(r, t):
        for n in (8, 4, 2, 1): ror("v_add_f32", r, n)
        xrow("v_add_f32", r, t)
    def bf16r(r):
        a(f"v_cvt_pk_bf16_f32 {v(r)}, {v(r)}, {v(r)}\nv_and_b32 {v(r)}, 0xffff0000, {v(r)}")
    def mfma(d, A, B, c=None):
        a(f"v_mfma_f32_16x16x32_bf16 {v(d,4)}, {v(A,4)}, {v(B,4)}, {'0' if c is None else v(c,4)}")
    def masks(vM, vt):
        a(f"""v_and_b32 {v(vt)}, 1, v0
        v_mov_b32 {v(vt+1)}, 0xffff
        v_lshlrev_b32 {v(vt)}, 4, {v(vt)}
        v_lshlrev_b32 {v(vt)}, {v(vt)}, {v(vt+1)}
        v_bfe_u32 {v(vt+1)}, v0, 1, 2""")
        for r in range(4):
            a(f"""v_cmp_eq_u32 vcc, {r}, {v(vt+1)}
            v_cndmask_b32 {v(vM+r)}, 0, {v(vt)}, vcc""")
    def afrag(dst, dup, vM):
        for r in range(4): a(f"v_and_b32 {v(dst+r)}, {v(dup)}, {v(vM+r)}")
    def tagchk(acc, base, n):
        first = True
        for gidx in range(n):
            for k in range(4):
                if first:
                    a(f"v_xor_b32 {v(acc)}, {sT[k]}, {v(base)}"); first = False
                else:
                    a(f"v_bitop3_b32 {v(acc)}, {v(acc)}, {v(base+4*gidx+k)}, {sT[k]} bitop3:0xf6")
        a(f"v_and_b32 {v(acc)}, 0xff, {v(acc)}")

    a(f""".amdgcn_target "amdgcn-amd-amdhsa--gfx950"
    .text
    .globl {NAME}_kernel
    .p2align 8
    .type {NAME}_kernel,@function
    {NAME}_kernel:""")
    a("L_code_begin:")
    a(f"s_cmp_ge_u32 {sB}, 256\ns_cbranch_scc1 L_end")
    stamp(0)
    ptrs = [(RX,0,1152),(RWQ,16,4718592),(RWUK,24,4194304),(RWS,104,WS_SIZE),(RCKV,8,16777216),
            (RWUV,32,4194304),(RWO,40,4718592),(RW1,56,5308416),(RW2,72,5308416),(RB1,64,9216),
            (RB2,80,1152),(ROUT,88,1152)]
    for r, off, sz in ptrs: a(f"s_load_dwordx2 s[{r}:{r+1}], s[0:1], {off}")
    a(f"""v_lshrrev_b32 v1, 6, v0
    v_and_b32 v0, 63, v0
    v_readfirstlane_b32 {sW}, v1""")
    for r, off, sz in ptrs: a(f"s_mov_b32 s{r+2}, {sz}\ns_mov_b32 s{r+3}, 0x20000")
    a(f"""s_and_b32 {sXCD}, {sB}, 7
    s_lshr_b32 {sI}, {sB}, 3
    s_lshr_b32 {sHH}, {sI}, 4
    s_and_b32 {sJ}, {sI}, 7
    s_lshl_b32 {sH}, {sHH}, 4
    s_lshl_b32 {sA}, {sXCD}, 1
    s_add_u32 {sH}, {sH}, {sA}
    s_bfe_u32 {sA}, {sI}, 0x10003
    s_add_u32 {sH}, {sH}, {sA}
    s_cmp_lt_u32 {sW}, 4
    s_cbranch_scc1 L_G""")

    sSW = sW
    SW = sK3
    vQ, vO, vM, vCNT, vONE, vDO, vRS = 1, 2, 4, 8, 9, 10, 11
    vT = 12
    vA0, vA1, vAC = 20, 24, 28
    vX = 36
    vE = 54; vB1 = 55; vWO = 56; vFF = 57; vL16 = 58; vL4 = 59
    vW2 = 60; vWB = 96; vW1 = 112; vWq = 112; vWO1 = 148
    a(f"""s_sub_u32 {SW}, {sW}, 4
    v_lshrrev_b32 {v(vQ)}, 3, v0
    v_and_b32 {v(vO)}, 7, v0
    v_lshlrev_b32 {v(vL16)}, 4, v0
    v_lshlrev_b32 {v(vL4)}, 2, v0
    v_mul_u32_u24 {v(vT)}, 147456, {v(vQ)}
    v_lshl_add_u32 {v(vT)}, {v(vO)}, 4, {v(vT)}
    v_and_b32 {v(vT+1)}, 15, v0
    v_lshlrev_b32 {v(vT+1)}, 13, {v(vT+1)}
    v_lshrrev_b32 {v(vT+2)}, 4, v0
    v_lshl_add_u32 {v(vT+1)}, {v(vT+2)}, 4, {v(vT+1)}
    s_mul_i32 {sA}, {SW}, {144*8192}
    s_lshl_b32 {sBb}, {sH}, 8
    s_add_u32 {sA}, {sA}, {sBb}
    s_lshl_b32 {sC}, {sJ}, 2
    s_add_u32 {sC}, {sC}, {SW}
    s_lshl_b32 {sC}, {sC}, 17
    s_add_u32 {sC}, {sC}, {sBb}
    s_lshl_b32 {sD}, {sH}, 3
    s_add_u32 {sD}, {sD}, {sJ}
    s_mul_i32 {sD}, {sD}, {INB}
    s_add_u32 {sD}, {sD}, {WS_IN}
    s_waitcnt lgkmcnt(0)
    buffer_load_dwordx4 {v(vX,4)}, {v(vL16)}, {srd(RX)}, 0 offen
    buffer_load_dword {v(vX+4)}, {v(vL4)}, {srd(RX)}, 0 offen offset:1024
    buffer_load_dword {v(vE)}, off, {srd(RWS)}, 0 sc1""")
    for rb in range(18):
        for cb in range(2):
            a(f"buffer_load_dwordx4 {v(vWq+8*rb+4*cb,4)}, {v(vT)}, {srd(RWQ)}, {sA} offen offset:{128*cb}")
        if rb < 17: a(f"s_add_u32 {sA}, {sA}, 8192")
    for ks in range(4):
        a(f"buffer_load_dwordx4 {v(vWB+4*ks,4)}, {v(vT+1)}, {srd(RWUK)}, {sC} offen offset:{64*ks}")
    for k in range(4): a(f"v_mov_b32 {v(vA0+k)}, -1")
    a(f"""s_lshl_b32 {sA}, {SW}, 12
    s_add_u32 {sA}, {sA}, {sD}
    s_lshl_b32 {sC}, {SW}, 8
    s_add_u32 {sC}, {sC}, {sD}
    s_add_u32 {sC}, {sC}, 16384""")
    for k in range(4):
        a(f"buffer_store_dwordx4 {v(vA0,4)}, {v(vL16)}, {srd(RWS)}, {sA} offen offset:{1024*k} sc1")
    a(f"buffer_store_dword {v(vA0)}, {v(vL4)}, {srd(RWS)}, {sC} offen sc1")
    stamp(1)
    a("s_barrier")
    masks(vM, vT)
    a(f"""v_mov_b32 {v(vCNT)}, {L_CNT}
    v_mov_b32 {v(vONE)}, 1
    v_mov_b32 {v(vFF)}, 0xff
    v_lshrrev_b32 {v(vRS)}, 5, v0
    v_bfe_u32 {v(vT)}, v0, 4, 1
    v_lshlrev_b32 {v(vT)}, 4, {v(vT)}
    v_lshl_add_u32 {v(vDO)}, {v(vO)}, 5, {v(vT)}""")
    F = 42
    a("s_waitcnt vmcnt(45)")
    a(f"v_readfirstlane_b32 {sT[0]}, {v(vE)}")
    for k in range(5):
        a(f"v_lshlrev_b32 {v(F+2*k)}, 16, {v(vX+k)}\nv_and_b32 {v(F+2*k+1)}, 0xffff0000, {v(vX+k)}")
    a(f"""s_add_u32 {sT[0]}, {sT[0]}, 1
    s_lshr_b32 {sT[1]}, {sT[0]}, 8
    s_lshr_b32 {sT[2]}, {sT[0]}, 16
    s_lshr_b32 {sT[3]}, {sT[0]}, 24""")
    a(f"v_add_f32 {v(vT)}, {v(F)}, {v(F+1)}")
    for k in range(2, 10): a(f"v_add_f32 {v(vT)}, {v(vT)}, {v(F+k)}")
    allsum(vT, vT+1)
    a(f"""v_mul_f32 {v(vT)}, {hx(f2u(1.0/576))}, {v(vT)}
    v_cmp_gt_u32 vcc, 32, v0""")
    a(f"v_sub_f32 {v(vT+3)}, {v(F)}, {v(vT)}\nv_mul_f32 {v(vT+2)}, {v(vT+3)}, {v(vT+3)}")
    for k in range(1, 10):
        a(f"v_sub_f32 {v(vT+3)}, {v(F+k)}, {v(vT)}")
        if k >= 8: a(f"v_cndmask_b32 {v(vT+3)}, 0, {v(vT+3)}, vcc")
        a(f"v_fmac_f32 {v(vT+2)}, {v(vT+3)}, {v(vT+3)}")
    allsum(vT+2, vT+1)
    a(f"v_mul_f32 {v(vT+2)}, {hx(f2u(1.0/576))}, {v(vT+2)}")
    bf16r(vT+2); bf16r(vT)
    a(f"v_add_f32 {v(vT+2)}, {hx(f2u(1e-5))}, {v(vT+2)}")
    bf16r(vT+2)
    a(f"v_sqrt_f32 {v(vT+2)}, {v(vT+2)}")
    bf16r(vT+2)
    a(f"v_rcp_f32 {v(vT+2)}, {v(vT+2)}")
    for k in range(10): a(f"v_sub_f32 {v(F+k)}, {v(F+k)}, {v(vT)}")
    for k in range(5):
        a(f"""v_cvt_pk_bf16_f32 {v(vT+3)}, {v(F+2*k)}, {v(F+2*k+1)}
        v_lshlrev_b32 {v(F+2*k)}, 16, {v(vT+3)}
        v_and_b32 {v(F+2*k+1)}, 0xffff0000, {v(vT+3)}""")
    for k in range(10):
        a(f"v_mul_f32 {v(F+k)}, {v(F+k)}, {v(vT+2)}\nv_cvt_pk_bf16_f32 {v(F+k)}, {v(F+k)}, {v(F+k)}")
    a(f"""v_lshlrev_b32 {v(vT)}, 5, v0
    v_lshlrev_b32 {v(vT+1)}, 3, v0
    v_add_u32 {v(vT)}, {L_XN}, {v(vT)}
    v_add_u32 {v(vT+1)}, {L_XN+2048}, {v(vT+1)}
    ds_write_b128 {v(vT)}, {v(F,4)}
    ds_write_b128 {v(vT)}, {v(F+4,4)} offset:16
    ds_write_b64 {v(vT+1)}, {v(F+8,2)}
    s_mul_i32 {sA}, {SW}, 576
    s_add_u32 {sA}, {sA}, {L_XN}
    v_mul_u32_u24 {v(vT)}, 72, {v(vQ)}
    v_add_u32 {v(vT)}, {sA}, {v(vT)}""")
    for k in range(9): a(f"ds_read_b64 {v(vX+2*k,2)}, {v(vT)} offset:{8*k}")
    a("s_waitcnt lgkmcnt(0)")
    stamp(2)
    for rb in range(18):
        A = vA0 if rb % 2 == 0 else vA1
        afrag(A, vX+rb, vM)
        a(f"s_waitcnt vmcnt({43-2*rb})")
        for cb in range(2):
            mfma(vAC+4*cb, A, vWq+8*rb+4*cb, None if rb == 0 else vAC+4*cb)
    a(f"""s_lshl_b32 {sA}, {SW}, 10
    s_add_u32 {sA}, {sA}, {L_QP}
    v_lshl_add_u32 {v(vT)}, {v(vRS)}, 9, {v(vDO)}
    v_add_u32 {v(vT)}, {sA}, {v(vT)}
    v_lshlrev_b32 {v(vT+1)}, 3, v0
    v_add_u32 {v(vT+1)}, {L_QP}, {v(vT+1)}""")
    set_exec(*VALIDMASK)
    a(f"ds_write_b128 {v(vT)}, {v(vAC,4)}\nds_write_b128 {v(vT)}, {v(vAC+4,4)} offset:256")
    signal(C_A, vONE, vCNT)
    stamp(3)
    lwait(C_A, vT+2, vCNT)
    for k in range(8): a(f"ds_read_b64 {v(vX+2*k,2)}, {v(vT+1)} offset:{512*k}")
    a(f"""v_add_u32 {v(vT+2)}, {L_QV}, {v(vL4)}
    v_lshrrev_b32 {v(vT+3)}, 4, v0
    v_lshlrev_b32 {v(vT+3)}, 4, {v(vT+3)}
    v_add_u32 {v(vT+4)}, {L_QV}, {v(vT+3)}
    s_waitcnt lgkmcnt(0)""")
    for step in (1, 2, 4):
        for k in range(0, 8, 2*step):
            a(f"v_pk_add_f32 {v(vX+2*k,2)}, {v(vX+2*k,2)}, {v(vX+2*(k+step),2)}")
    a(f"""v_cvt_pk_bf16_f32 {v(vX)}, {v(vX)}, {v(vX+1)}
    ds_write_b32 {v(vT+2)}, {v(vX)}""")
    for ks in range(4): a(f"ds_read_b128 {v(vX+2+4*ks,4)}, {v(vT+4)} offset:{64*ks}")
    a(f"""s_lshl_b32 {sA}, {sH}, 5
    s_lshl_b32 {sBb}, {sJ}, 2
    s_add_u32 {sA}, {sA}, {sBb}
    s_add_u32 {sA}, {sA}, {SW}
    s_lshl_b32 {sA}, {sA}, 6
    s_add_u32 {sA}, {sA}, {WS_Q}
    s_waitcnt vmcnt(5) lgkmcnt(0)""")
    for ks in range(4): mfma(vAC, vWB+4*ks, vX+2+4*ks, None if ks == 0 else vAC)
    a(f"""v_and_b32 {v(vT)}, 15, v0
    v_lshlrev_b32 {v(vT)}, 11, {v(vT)}
    v_lshl_add_u32 {v(vT)}, {v(vT+3)}, 1, {v(vT)}
    s_lshl_b32 {sC}, {sHH}, 15
    s_lshl_b32 {sBb}, {SW}, 9
    s_add_u32 {sC}, {sC}, {sBb}
    s_add_u32 {sC}, {sC}, {WS_Q}""")
    for k in range(4): a(f"v_bfi_b32 {v(vAC+k)}, {v(vFF)}, {sT[k]}, {v(vAC+k)}")
    a("s_waitcnt vmcnt(0)")
    set_exec(0x00010001, 0x00010001)
    a(f"buffer_store_dwordx4 {v(vAC,4)}, {v(vT+3)}, {srd(RWS)}, {sA} offen sc1")
    a("s_mov_b64 exec, -1")
    stamp(4)
    G = vW2
    Lq = a.label("gq"); Dq = a.label("gqd")
    a(f"s_mov_b32 {sSpin}, {cfg.spin_max}\n{Lq}:")
    for t in range(4):
        for u in range(2):
            a(f"buffer_load_dwordx4 {v(G+8*t+4*u,4)}, {v(vT)}, {srd(RWS)}, {sC} offen offset:{128*t+16*u} sc1")
    a("s_waitcnt vmcnt(0)")
    tagchk(vT+1, G, 8)
    a(f"""v_cmp_ne_u32 vcc, 0, {v(vT+1)}
    s_and_b64 exec, exec, vcc
    s_cbranch_execz {Dq}
    s_sub_u32 {sSpin}, {sSpin}, 1
    s_cbranch_scc0 {Lq}
    {Dq}:
    s_mov_b64 exec, -1
    s_lshl_b32 {sA}, {SW}, 12
    s_add_u32 {sA}, {sA}, {L_QF}
    v_add_u32 {v(vT+1)}, {sA}, {v(vL16)}""")
    for t in range(4):
        for k in range(4): a(f"v_cvt_pk_bf16_f32 {v(G+8*t+k)}, {v(G+8*t+2*k)}, {v(G+8*t+2*k+1)}")
        a(f"ds_write_b128 {v(vT+1)}, {v(G+8*t,4)} offset:{1024*t}")
    signal(C_Q, vONE, vCNT)
    stamp(5)
    Lnf1 = a.label("nf1"); Lnf2 = a.label("nf2"); Lnf3 = a.label("nf3")
    a(f"""s_mul_i32 {sU}, {sXCD}, 18
    s_add_u32 {sU}, {sU}, {sI}
    s_cmp_ge_u32 {sI}, 18
    s_cbranch_scc1 {Lnf1}
    s_lshl_b32 {sA}, {sU}, 2
    s_add_u32 {sA}, {sA}, {SW}
    s_mul_i32 {sC}, {sA}, {8*1152}
    s_lshl_b32 {sA}, {sA}, 4
    v_lshlrev_b32 {v(vT)}, 1, {v(vQ)}
    buffer_load_ushort {v(vB1)}, {v(vT)}, {srd(RB1)}, {sA} offen
    v_lshrrev_b32 {v(vT+1)}, 2, v0
    v_mul_u32_u24 {v(vT+2)}, 82944, {v(vT+1)}
    v_and_b32 {v(vT+3)}, 3, v0
    v_lshl_add_u32 {v(vT+2)}, {v(vT+3)}, 4, {v(vT+2)}
    s_mul_i32 {sA}, {SW}, {144*9216}
    s_lshl_b32 {sBb}, {sU}, 6
    s_add_u32 {sA}, {sA}, {sBb}""")
    for r in range(9):
        a(f"buffer_load_dwordx4 {v(vW1+4*r,4)}, {v(vT+2)}, {srd(RW1)}, {sA} offen")
        if r < 8: a(f"s_add_u32 {sA}, {sA}, 9216")
    a(f"""v_mul_u32_u24 {v(vT+2)}, 1152, {v(vQ)}
    v_lshl_add_u32 {v(vT+2)}, {v(vO)}, 4, {v(vT+2)}
    s_waitcnt lgkmcnt(0)""")
    for cb in range(9):
        a(f"buffer_load_dwordx4 {v(vW2+4*cb,4)}, {v(vT+2)}, {srd(RW2)}, {sC} offen offset:{128*cb}")
    a(f"{Lnf1}:")
    a(f"""v_bfe_u32 {v(vT)}, {v(vQ)}, 1, 1
    v_lshlrev_b32 {v(vT)}, 4, {v(vT)}
    v_lshrrev_b32 {v(vT+1)}, 2, {v(vQ)}
    v_lshl_add_u32 {v(vT)}, {v(vT+1)}, 2, {v(vT)}
    v_and_b32 {v(vT+1)}, 1, {v(vQ)}
    v_lshl_add_u32 {v(vT)}, {v(vT+1)}, 1, {v(vT)}
    v_lshlrev_b32 {v(vT)}, 13, {v(vT)}
    v_lshl_add_u32 {v(vT)}, {v(vO)}, 4, {v(vT)}
    s_lshl_b32 {sA}, {sJ}, 6
    s_lshr_b32 {sBb}, {SW}, 1
    s_lshl_b32 {sBb}, {sBb}, 5
    s_add_u32 {sA}, {sA}, {sBb}
    s_and_b32 {sBb}, {SW}, 1
    s_lshl_b32 {sBb}, {sBb}, 3
    s_add_u32 {sA}, {sA}, {sBb}
    s_lshl_b32 {sA}, {sA}, 13
    s_lshl_b32 {sBb}, {sH}, 8
    s_add_u32 {sA}, {sA}, {sBb}
    s_add_u32 {sBb}, {sA}, 8192""")
    for b in range(2):
        for cb in range(2):
            a(f"buffer_load_dwordx4 {v(vWB+8*b+4*cb,4)}, {v(vT)}, {srd(RWUV)}, {sA if b == 0 else sBb} offen offset:{128*cb}")
    a(f"""v_mul_u32_u24 {v(vWO)}, 4608, {v(vQ)}
    v_lshl_add_u32 {v(vWO)}, {v(vO)}, 4, {v(vWO)}
    s_lshl_b32 {sK0}, {sH}, 2
    s_add_u32 {sK0}, {sK0}, {SW}
    s_mul_i32 {sK0}, {sK0}, {32*1152}
    s_add_u32 {sK1}, {sK0}, 2304""")
    def wo_reg(b, cb): return (vWO1 + 4*(9*b+cb)) if b < 3 else (vW1 + 4*cb)
    def wo_load(b):
        for cb in range(9):
            a(f"buffer_load_dwordx4 {v(wo_reg(b,cb),4)}, {v(vWO)}, {srd(RWO)}, {sK0 if b < 2 else sK1} offen offset:{(b%2)*1152+128*cb}")
    for b in range(3): wo_load(b)
    vRA = 3
    a(f"""s_mul_i32 {sA}, {SW}, 4608
    s_add_u32 {sA}, {sA}, {L_RED}
    v_mul_u32_u24 {v(vRA)}, 2304, {v(vRS)}
    v_add3_u32 {v(vRA)}, {v(vRA)}, {v(vDO)}, {sA}
    s_cmp_ge_u32 {sI}, 18
    s_cbranch_scc1 {Lnf2}""")
    a(f"""s_mul_i32 {sA}, {SW}, 576
    s_add_u32 {sA}, {sA}, {L_XN}
    v_lshrrev_b32 {v(vT)}, 2, v0
    v_mul_u32_u24 {v(vT)}, 36, {v(vT)}
    v_add_u32 {v(vT)}, {sA}, {v(vT)}""")
    for k in range(4): a(f"ds_read2_b32 {v(vX+2*k,2)}, {v(vT)} offset0:{2*k} offset1:{2*k+1}")
    a(f"ds_read_b32 {v(vX+8)}, {v(vT)} offset:32")
    for k in range(8): a(f"v_mov_b32 {v(vAC+k)}, 0")
    a("s_waitcnt lgkmcnt(0)")
    for r in range(9):
        a(f"v_and_b32 {v(vX+9+r)}, 0xffff0000, {v(vX+r)}\nv_and_b32 {v(vX+r)}, 0xffff, {v(vX+r)}")
    for r in range(9):
        a(f"s_waitcnt vmcnt({8-r+9+4+27})")
        for k in range(4):
            a(f"v_dot2c_f32_bf16 {v(vAC+2*k)}, {v(vW1+4*r+k)}, {v(vX+r)}")
            a(f"v_dot2c_f32_bf16 {v(vAC+2*k+1)}, {v(vW1+4*r+k)}, {v(vX+9+r)}")
    wo_load(3)
    for k in range(4): a(f"v_permlane32_swap_b32 {v(vAC+k)}, {v(vAC+k+4)}")
    for k in range(4): a(f"v_add_f32 {v(vAC+k)}, {v(vAC+k)}, {v(vAC+k+4)}")
    for k in range(2): a(f"v_permlane16_swap_b32 {v(vAC+k)}, {v(vAC+k+2)}")
    for k in range(2): a(f"v_add_f32 {v(vAC+k)}, {v(vAC+k)}, {v(vAC+k+2)}")
    for n in (8, 4):
        for k in range(2): ror("v_add_f32", vAC+k, n)
    a(f"""v_and_b32 {v(vT)}, 3, v0
    v_lshlrev_b32 {v(vT)}, 7, {v(vT)}
    v_lshrrev_b32 {v(vT+1)}, 4, v0
    v_lshl_add_u32 {v(vT)}, {v(vT+1)}, 5, {v(vT)}
    s_lshl_b32 {sA}, {SW}, 2
    s_add_u32 {sA}, {sA}, {L_HP}
    v_add_u32 {v(vT)}, {sA}, {v(vT)}
    ds_write2_b32 {v(vT)}, {v(vAC)}, {v(vAC+1)} offset0:0 offset1:4""")
    signal(C_H, vONE, vCNT)
    a(f"""s_lshl_b32 {sA}, {SW}, 7
    s_add_u32 {sA}, {sA}, {L_HP}
    v_lshl_add_u32 {v(vT)}, {v(vQ)}, 4, {sA}
    v_lshlrev_b32 {v(vB1)}, 16, {v(vB1)}""")
    lwait(C_H, vT+1, vCNT)
    a(f"""ds_read_b128 {v(vAC,4)}, {v(vT)}
    s_waitcnt lgkmcnt(0)
    v_add_f32 {v(vAC)}, {v(vAC)}, {v(vAC+1)}
    v_add_f32 {v(vAC+2)}, {v(vAC+2)}, {v(vAC+3)}
    v_add_f32 {v(vAC)}, {v(vAC)}, {v(vAC+2)}""")
    bf16r(vAC)
    a(f"v_add_f32 {v(vAC)}, {v(vAC)}, {v(vB1)}")
    bf16r(vAC)
    K = -2.0 * 1.4426950408889634 * 0.7978845608028654
    a(f"""v_mul_f32 {v(vAC+1)}, {v(vAC)}, {v(vAC)}
    v_mov_b32 {v(vAC+2)}, {hx(f2u(K))}
    v_fmac_f32 {v(vAC+2)}, {hx(f2u(K*0.044715))}, {v(vAC+1)}
    v_mul_f32 {v(vAC+2)}, {v(vAC+2)}, {v(vAC)}
    v_exp_f32 {v(vAC+2)}, {v(vAC+2)}
    v_add_f32 {v(vAC+2)}, 1.0, {v(vAC+2)}
    v_rcp_f32 {v(vAC+2)}, {v(vAC+2)}
    v_mul_f32 {v(vAC)}, {v(vAC)}, {v(vAC+2)}
    v_cvt_pk_bf16_f32 {v(vAC)}, {v(vAC)}, {v(vAC)}""")
    afrag(vT+4, vAC, vM)
    vY = 20
    for cb in range(9):
        a(f"s_waitcnt vmcnt({8-cb+40})")
        mfma(vY+4*cb, vT+4, vW2+4*cb)
    lwait(C_QC, vT+1, vCNT)
    def red_publish(acc, cnt, wsbase, sidx, stampk):
        set_exec(*VALIDMASK)
        for cb in range(9): a(f"ds_write_b128 {v(vRA)}, {v(acc+4*cb,4)} offset:{256*cb}")
        signal(cnt, vONE, vCNT)
        Lsk = a.label("rsk")
        a(f"""s_cmp_eq_u32 {SW}, 3
        s_cbranch_scc1 {Lsk}
        s_lshl_b32 {sA}, {SW}, 10
        v_add_u32 {v(vT)}, {sA}, {v(vL16)}
        v_add_u32 {v(vT+2)}, {L_RED}, {v(vT)}
        s_mul_i32 {sC}, {sidx}, 2304
        s_add_u32 {sC}, {sC}, {wsbase}""")
        lwait(cnt, vT+1, vCNT)
        a(f"v_cmp_gt_u32 vcc, 2304, {v(vT)}\ns_mov_b64 exec, vcc")
        for k in range(8): a(f"ds_read_b128 {v(acc+4*k,4)}, {v(vT+2)} offset:{2304*k}")
        for step, w in ((1, None), (2, None), (4, None)):
            for k in range(0, 8, 2*step):
                if step == 1: a(f"s_waitcnt lgkmcnt({6-k})")
                for hlf in range(2):
                    a(f"v_pk_add_f32 {v(acc+4*k+2*hlf,2)}, {v(acc+4*k+2*hlf,2)}, {v(acc+4*(k+step)+2*hlf,2)}")
        for k in range(4): a(f"v_bfi_b32 {v(acc+k)}, {v(vFF)}, {sT[k]}, {v(acc+k)}")
        a(f"""buffer_store_dwordx4 {v(acc,4)}, {v(vT)}, {srd(RWS)}, {sC} offen sc1
        s_mov_b64 exec, -1
        {Lsk}:""")
    red_publish(vY, C_Y, WS_Y, sU, None)
    a(f"s_branch {Lnf3}\n{Lnf2}:")
    wo_load(3)
    a(f"{Lnf3}:")
    stamp(6)
    a(f"""s_lshl_b32 {sA}, {SW}, 6
    s_add_u32 {sA}, {sA}, {L_P3}
    v_lshl_add_u32 {v(vT)}, {v(vQ)}, 3, {sA}
    v_mov_b32 {v(vT+2)}, {L_S3}
    s_lshl_b32 {sA}, {SW}, 10
    s_add_u32 {sA}, {sA}, {L_QP}
    v_lshl_add_u32 {v(vT+3)}, {v(vRS)}, 9, {v(vDO)}
    v_add_u32 {v(vT+3)}, {sA}, {v(vT+3)}
    s_lshl_b32 {sA}, {SW}, 7
    s_add_u32 {sA}, {sA}, {L_QP}
    v_lshl_add_u32 {v(vT+4)}, {v(vQ)}, 4, {sA}""")
    lwait(C_C, vT+1, vCNT, sleep=1)
    stamp(7)
    ST = 36; PT = 60
    a(f"ds_read_b128 {v(ST,4)}, {v(vT+2)}\nds_read_b128 {v(ST+4,4)}, {v(vT+2)} offset:16")
    for k in range(8): a(f"ds_read_b64 {v(PT+2*k,2)}, {v(vT)} offset:{256*k}")
    a(f"""s_waitcnt lgkmcnt(8)
    v_max_f32 {v(44)}, {v(ST)}, {v(ST+2)}
    v_max3_f32 {v(44)}, {v(44)}, {v(ST+4)}, {v(ST+6)}""")
    for k in range(4): a(f"v_sub_f32 {v(ST+2*k)}, {v(ST+2*k)}, {v(44)}")
    for k in range(4): a(f"v_exp_f32 {v(ST+2*k)}, {v(ST+2*k)}")
    a(f"v_mul_f32 {v(45)}, {v(ST)}, {v(ST+1)}")
    for k in range(1, 4): a(f"v_fmac_f32 {v(45)}, {v(ST+2*k)}, {v(ST+2*k+1)}")
    a(f"v_rcp_f32 {v(45)}, {v(45)}\ns_waitcnt lgkmcnt(0)")
    for k in range(4): a(f"v_pk_add_f32 {v(PT+4*k,2)}, {v(PT+4*k,2)}, {v(PT+4*k+2,2)}")
    for b in range(2):
        a(f"v_mul_f32 {v(46+b)}, {v(ST)}, {v(PT+b)}")
        for k in range(1, 4): a(f"v_fmac_f32 {v(46+b)}, {v(ST+2*k)}, {v(PT+4*k+b)}")
    for b in range(2):
        a(f"v_mul_f32 {v(46+b)}, {v(46+b)}, {v(45)}\nv_cvt_pk_bf16_f32 {v(46+b)}, {v(46+b)}, {v(46+b)}")
    afrag(vA0, 46, vM); afrag(vA1, 47, vM)
    a("s_waitcnt vmcnt(36)")
    for b in range(2):
        for cb in range(2):
            mfma(vAC+4*cb, vA0 if b == 0 else vA1, vWB+8*b+4*cb, None if b == 0 else vAC+4*cb)
    set_exec(*VALIDMASK)
    a(f"ds_write_b128 {v(vT+3)}, {v(vAC,4)}\nds_write_b128 {v(vT+3)}, {v(vAC+4,4)} offset:256")
    signal(C_D, vONE, vCNT)
    lwait(C_D, vT+1, vCNT)
    CP = 20
    for k in range(8): a(f"ds_read_b128 {v(CP+4*k,4)}, {v(vT+4)} offset:{512*k}")
    for step in (1, 2, 4):
        for k in range(0, 8, 2*step):
            if step == 1: a(f"s_waitcnt lgkmcnt({6-k})")
            for hlf in range(2):
                a(f"v_pk_add_f32 {v(CP+4*k+2*hlf,2)}, {v(CP+4*k+2*hlf,2)}, {v(CP+4*(k+step)+2*hlf,2)}")
    for b in range(4): a(f"v_cvt_pk_bf16_f32 {v(CP+b)}, {v(CP+b)}, {v(CP+b)}")
    for b in range(4): afrag(CP+4+4*b, CP+b, vM)
    vS = vW2
    for b in range(4):
        for cb in range(9):
            a(f"s_waitcnt vmcnt({35-9*b-cb})")
            mfma(vS+4*cb, CP+4+4*b, wo_reg(b, cb), None if b == 0 else vS+4*cb)
    stamp(8)
    red_publish(vS, C_S, WS_S, sB, None)
    stamp(9)
    flush_stamps(vT, vT+1, 10)
    a("s_endpgm")

    GW = sW
    gM, gCNT, gONE, gT = 4, 8, 9, 12
    gL16, gG, gH = 1, 2, 3
    gCA, gPA0, gPA1, gPW, gSO = 28, 29, 30, 31, 10
    gST = 32
    gS = 72; gP = 80; gAC = 96; gQF = 128; gCF = 192; gPV = 128
    a("L_G:")
    a(f"""v_lshlrev_b32 {v(gL16)}, 4, v0
    s_lshl_b32 {sP}, {sXCD}, 4
    s_and_b32 {sA}, {sI}, 15
    s_add_u32 {sP}, {sP}, {sA}
    s_lshl_b32 {sC}, {sP}, 2
    s_add_u32 {sC}, {sC}, {GW}
    s_lshl_b32 {sC}, {sC}, 15
    s_mul_i32 {sD}, {GW}, {32*ROW}
    v_mov_b32 {v(gCNT)}, {L_CNT}
    v_mov_b32 {v(gONE)}, 1""")
    Lz = a.label("z")
    a(f"""s_cmp_lg_u32 {GW}, 0
    s_cbranch_scc1 {Lz}
    v_lshlrev_b32 {v(gT)}, 2, v0
    v_add_u32 {v(gT)}, {L_CNT}, {v(gT)}
    v_mov_b32 {v(gT+1)}, 0
    s_mov_b64 exec, 0xffff
    ds_write_b32 {v(gT)}, {v(gT+1)}
    s_mov_b64 exec, -1
    {Lz}:""")
    if cfg.code_prefetch:
        a(f"""s_getpc_b64 s[{RCODE}:{RCODE+1}]
        L_pc:
        s_sub_u32 s{RCODE}, s{RCODE}, L_pc-L_code_begin
        s_subb_u32 s{RCODE+1}, s{RCODE+1}, 0
        s_mov_b32 s{RCODE+2}, L_code_end-L_code_begin
        s_mov_b32 s{RCODE+3}, 0x20000
        s_lshl_b32 {sA}, {sI}, 2
        s_add_u32 {sA}, {sA}, {GW}
        s_and_b32 {sA}, {sA}, 15
        s_lshl_b32 {sA}, {sA}, 10
        v_add_u32 {v(gT+3)}, {sA}, {v(gL16)}
        buffer_load_dwordx4 {v(gT+4,4)}, {v(gT+3)}, {srd(RCODE)}, 0 offen""")
    a(f"""s_waitcnt lgkmcnt(0)
    buffer_load_dword {v(gT+2)}, off, {srd(RWS)}, 0 sc1
    s_barrier""")
    stamp(1)
    Ld = a.label("dma")
    a(f"""s_mov_b32 {sA}, 0
    {Ld}:
    s_mov_b32 m0, {sD}
    s_add_u32 {sD}, {sD}, {ROW}
    buffer_load_dwordx4 {v(gL16)}, {srd(RCKV)}, {sC} offen lds
    s_add_u32 {sC}, {sC}, 1024""")
    if cfg.dma_win: a(f"s_waitcnt vmcnt({cfg.dma_win})")
    a(f"""s_add_u32 {sA}, {sA}, 1
    s_cmp_lt_u32 {sA}, 32
    s_cbranch_scc1 {Ld}""")
    stamp(2)
    masks(gM, gT)
    a(f"""v_lshrrev_b32 {v(gG)}, 4, v0
    v_and_b32 {v(gH)}, 15, v0
    s_mul_i32 {sA}, {GW}, {32*ROW}
    v_mul_u32_u24 {v(gCA)}, {ROW}, {v(gH)}
    v_lshlrev_b32 {v(gT)}, 4, {v(gG)}
    v_add3_u32 {v(gCA)}, {v(gCA)}, {v(gT)}, {sA}
    v_lshrrev_b32 {v(gT)}, 2, v0
    v_mul_u32_u24 {v(gPA0)}, {ROW}, {v(gT)}
    v_and_b32 {v(gT)}, 3, v0
    v_lshlrev_b32 {v(gT)}, 3, {v(gT)}
    s_lshl_b32 {sA}, {GW}, 8
    v_add3_u32 {v(gPA0)}, {v(gPA0)}, {v(gT)}, {sA}
    v_add_u32 {v(gPA1)}, {64*ROW}, {v(gPA0)}
    v_add_u32 {v(gPW)}, {L_QP}, {v(gL16)}
    v_add_u32 {v(gT+3)}, {L_QF}, {v(gL16)}
    s_waitcnt vmcnt(32)
    v_readfirstlane_b32 {sT[0]}, {v(gT+2)}
    s_add_u32 {sT[0]}, {sT[0]}, 1
    s_lshr_b32 {sT[1]}, {sT[0]}, 8
    s_lshr_b32 {sT[2]}, {sT[0]}, 16
    s_lshr_b32 {sT[3]}, {sT[0]}, 24
    s_mov_b32 {sK0}, {hx(f2u(128 ** -0.5))}
    s_mov_b32 {sK1}, {hx(f2u(1.4426950408889634))}""")
    lwait(C_Q, gT, gCNT, sleep=1)
    stamp(3)
    for ks in range(16):
        a(f"ds_read_b128 {v(gQF+4*ks,4)}, {v(gT+3)} offset:{1024*ks}")
        if ks == 11: a("s_waitcnt lgkmcnt(8)")
    signal(C_QC, gONE, gCNT)
    def round_scores(base):
        if cfg.mimic:
            for k in range(2):
                a(f"v_cvt_pk_bf16_f32 {v(gT+k)}, {v(base+2*k)}, {v(base+2*k+1)}")
            for k in range(2):
                a(f"v_lshlrev_b32 {v(base+2*k)}, 16, {v(gT+k)}\nv_and_b32 {v(base+2*k+1)}, 0xffff0000, {v(gT+k)}")
        for k in range(4): a(f"v_mul_f32 {v(base+k)}, {sK0}, {v(base+k)}")
        if cfg.mimic:
            for k in range(2):
                a(f"v_cvt_pk_bf16_f32 {v(gT+k)}, {v(base+2*k)}, {v(base+2*k+1)}")
            for k in range(2):
                a(f"v_lshlrev_b32 {v(base+2*k)}, 16, {v(gT+k)}\nv_and_b32 {v(base+2*k+1)}, 0xffff0000, {v(gT+k)}")
    for tile in range(2):
        a(f"s_waitcnt vmcnt({16 if tile == 0 else 0})")
        if tile == 1:
            signal(C_L, gONE, gCNT)
            stamp(4)
        for ks in range(8): a(f"ds_read_b128 {v(gCF+4*ks,4)}, {v(gCA)} offset:{tile*16*ROW+64*ks}")
        if tile == 1: round_scores(gS)
        for ks in range(16):
            a(f"s_waitcnt lgkmcnt({min(7, 15-ks)})")
            mfma(gS+4*tile, gCF+4*ks, gQF+4*ks, None if ks == 0 else gS+4*tile)
            if ks < 8: a(f"ds_read_b128 {v(gCF+4*(ks+8),4)}, {v(gCA)} offset:{tile*16*ROW+64*(ks+8)}")
    lwait(C_L, gT, gCNT)
    trs = []
    for kw in range(4):
        for t in range(8):
            for hf in range(2):
                base = gPA0 if kw < 2 else gPA1
                trs.append(f"ds_read_b64_tr_b16 {v(gPV+32*kw+4*t+2*hf,2)}, {v(base)} offset:{(kw%2)*32*ROW+hf*16*ROW+32*t}")
    tri = [0]
    def tr(n):
        for _ in range(n):
            if tri[0] < len(trs): a(trs[tri[0]]); tri[0] += 1
    tr(12)
    round_scores(gS+4)
    tr(4)
    a(f"""v_max3_f32 {v(gT)}, {v(gS)}, {v(gS+1)}, {v(gS+2)}
    v_max3_f32 {v(gT+1)}, {v(gS+3)}, {v(gS+4)}, {v(gS+5)}
    v_max3_f32 {v(gT)}, {v(gT)}, {v(gS+6)}, {v(gS+7)}
    v_max_f32 {v(gT)}, {v(gT)}, {v(gT+1)}""")
    tr(2)
    xrow("v_max_f32", gT, gT+1)
    tr(2)
    a(f"v_mul_f32 {v(gT)}, {sK1}, {v(gT)}\nv_ceil_f32 {v(gT)}, {v(gT)}")
    for k in range(8): a(f"v_fma_f32 {v(gS+k)}, {v(gS+k)}, {sK1}, -{v(gT)}")
    tr(4)
    for k in range(8):
        a(f"v_exp_f32 {v(gS+k)}, {v(gS+k)}")
        if k % 2 == 1: tr(1)
    for k in range(4): a(f"v_cvt_pk_bf16_f32 {v(gP+k)}, {v(gS+2*k)}, {v(gS+2*k+1)}")
    a(f"""s_lshl_b32 {sA}, {GW}, 10
    v_add_u32 {v(gT+2)}, {sA}, {v(gPW)}
    ds_write_b128 {v(gT+2)}, {v(gP,4)}""")
    for k in range(4): a(f"v_add_f32 {v(gS+2*k)}, {v(gS+2*k)}, {v(gS+2*k+1)}")
    a(f"""v_add_f32 {v(gS)}, {v(gS)}, {v(gS+2)}
    v_add_f32 {v(gS+4)}, {v(gS+4)}, {v(gS+6)}
    v_add_f32 {v(gT+1)}, {v(gS)}, {v(gS+4)}""")
    xrow("v_add_f32", gT+1, gT+2)
    a(f"""s_lshl_b32 {sA}, {GW}, 3
    s_add_u32 {sA}, {sA}, {L_PS}
    v_lshl_add_u32 {v(gT+2)}, {v(gH)}, 5, {sA}
    ds_write_b64 {v(gT+2)}, {v(gT,2)}""")
    signal(C_P, gONE, gCNT)
    v_ps = gT+3
    a(f"v_lshlrev_b32 {v(v_ps)}, 5, {v(gH)}\nv_add_u32 {v(v_ps)}, {L_PS}, {v(v_ps)}")
    while tri[0] < len(trs):
        tr(1)
    a(f"""v_mul_u32_u24 {v(gSO)}, {8*INB}, {v(gH)}
    v_lshl_add_u32 {v(gT+4)}, {v(gG)}, 4, {v(gSO)}
    s_lshl_b32 {sC}, {sHH}, 7
    s_lshl_b32 {sA}, {GW}, 1
    s_add_u32 {sC}, {sC}, {sA}
    s_mul_i32 {sC}, {sC}, {INB}
    s_add_u32 {sC}, {sC}, {WS_IN}
    s_lshl_b32 {sA}, {sP}, 7
    s_add_u32 {sD}, {sC}, {sA}
    s_add_u32 {sK2}, {sD}, {INB}
    s_and_b32 {sA}, {sP}, 0x60
    s_bfe_u32 {sBb}, {sP}, 0x20003
    s_add_u32 {sA}, {sA}, {sBb}
    s_and_b32 {sBb}, {sP}, 7
    s_lshl_b32 {sBb}, {sBb}, 2
    s_add_u32 {sA}, {sA}, {sBb}
    s_lshl_b32 {sA}, {sA}, 3
    s_add_u32 {sC}, {sC}, {sA}
    s_add_u32 {sC}, {sC}, 16384
    v_mul_u32_u24 {v(gT+5)}, {INB}, {v(gG)}
    v_add_u32 {v(gSO)}, {v(gSO)}, {v(gT+5)}""")
    lwait(C_P, gT, gCNT)
    stamp(5)
    a(f"ds_read_b128 {v(gST,4)}, {v(v_ps)}\nds_read_b128 {v(gST+4,4)}, {v(v_ps)} offset:16")
    for kw in range(4): a(f"ds_read_b128 {v(gP+4*kw,4)}, {v(gPW)} offset:{1024*kw}")
    MX = gT; LS = gT+1
    a(f"""s_waitcnt lgkmcnt(4)
    v_max_f32 {v(MX)}, {v(gST)}, {v(gST+2)}
    v_max3_f32 {v(MX)}, {v(MX)}, {v(gST+4)}, {v(gST+6)}""")
    for kw in range(4): a(f"v_sub_f32 {v(gST+2*kw)}, {v(MX)}, {v(gST+2*kw)}")
    for kw in range(4): a(f"v_cvt_u32_f32 {v(gST+2*kw)}, {v(gST+2*kw)}")
    for kw in range(4): a(f"v_min_u32 {v(gST+2*kw)}, 0xff, {v(gST+2*kw)}")
    a(f"s_mov_b32 {sA}, 0x800080")
    for kw in range(4): a(f"v_mul_u32_u24 {v(gT+6+kw)}, {sA}, {v(gST+2*kw)}")
    for kw in range(4):
        a(f"s_waitcnt lgkmcnt({3-kw})")
        for k in range(4): a(f"v_pk_sub_u16 {v(gP+4*kw+k)}, {v(gP+4*kw+k)}, {v(gT+6+kw)} clamp")
        for t in range(8):
            mfma(gAC+4*t, gPV+32*kw+4*t, gP+4*kw, None if kw == 0 else gAC+4*t)
            if t == 0: a(f"v_sub_u32 {v(gST+2*kw)}, 0, {v(gST+2*kw)}")
            if t == 1: a(f"v_ldexp_f32 {v(gST+2*kw+1)}, {v(gST+2*kw+1)}, {v(gST+2*kw)}")
            if t == 2 and kw == 1: a(f"v_add_f32 {v(LS)}, {v(gST+1)}, {v(gST+3)}")
            if t == 2 and kw >= 2: a(f"v_add_f32 {v(LS)}, {v(LS)}, {v(gST+2*kw+1)}")
    OB = gS
    for jj in range(2):
        for u in range(2):
            t = 4*jj + 2*u
            ob = OB + 4*u
            for k in range(4):
                tt = t + k//2; r = 2*(k % 2)
                a(f"v_cvt_pk_bf16_f32 {v(ob+k)}, {v(gAC+4*tt+r)}, {v(gAC+4*tt+r+1)}")
            a(f"buffer_store_dwordx4 {v(ob,4)}, {v(gT+4)}, {srd(RWS)}, {sD if jj == 0 else sK2} offen offset:{64*u} sc1")
    set_exec(0xffffffff, 0)
    a(f"buffer_store_dwordx2 {v(MX,2)}, {v(gSO)}, {srd(RWS)}, {sC} offen sc1\ns_mov_b64 exec, -1")
    stamp(6)
    gD = 128; gS3 = 144
    a(f"""s_lshl_b32 {sC}, {sH}, 3
    s_add_u32 {sC}, {sC}, {sJ}
    s_mul_i32 {sC}, {sC}, {INB}
    s_add_u32 {sC}, {sC}, {WS_IN}
    s_lshl_b32 {sA}, {GW}, 8
    s_add_u32 {sD}, {sC}, {sA}
    s_add_u32 {sD}, {sD}, 16384
    s_lshl_b32 {sA}, {GW}, 12
    s_add_u32 {sC}, {sC}, {sA}
    v_lshrrev_b32 {v(gT+2)}, 3, v0
    v_lshlrev_b32 {v(gT+2)}, 5, {v(gT+2)}
    s_mov_b32 {sSpin}, {cfg.spin_max}""")
    L3 = a.label("g3"); D3 = a.label("g3d")
    a(f"{L3}:")
    for k in range(2): a(f"buffer_load_dwordx4 {v(gS3+4*k,4)}, {v(gT+2)}, {srd(RWS)}, {sD} offen offset:{16*k} sc1")
    for k in range(4): a(f"buffer_load_dwordx4 {v(gD+4*k,4)}, {v(gL16)}, {srd(RWS)}, {sC} offen offset:{1024*k} sc1")
    a(f"""s_waitcnt vmcnt(0)
    v_max3_u32 {v(gT+3)}, {v(gS3)}, {v(gS3+2)}, {v(gS3+4)}
    v_max3_u32 {v(gT+4)}, {v(gS3+6)}, {v(gD+3)}, {v(gD+7)}
    v_max3_u32 {v(gT+3)}, {v(gT+3)}, {v(gD+11)}, {v(gD+15)}
    v_max_u32 {v(gT+3)}, {v(gT+3)}, {v(gT+4)}
    v_cmp_eq_u32 vcc, -1, {v(gT+3)}
    s_and_b64 exec, exec, vcc
    s_cbranch_execz {D3}
    s_sub_u32 {sSpin}, {sSpin}, 1
    s_cbranch_scc0 {L3}
    {D3}:
    s_mov_b64 exec, -1""")
    stamp(7)
    a(f"""v_max_f32 {v(MX)}, {v(gS3)}, {v(gS3+2)}
    v_max3_f32 {v(MX)}, {v(MX)}, {v(gS3+4)}, {v(gS3+6)}""")
    ror("v_max_f32", MX, 8)
    xrow("v_max_f32", MX, gT+2)
    for k in range(4): a(f"v_sub_f32 {v(gS3+2*k)}, {v(gS3+2*k)}, {v(MX)}")
    for k in range(4): a(f"v_exp_f32 {v(gS3+2*k)}, {v(gS3+2*k)}")
    for k in range(4): a(f"v_cvt_pk_bf16_f32 {v(gT+4+k)}, {v(gS3+2*k)}, {v(gS3+2*k)}")
    for k in range(4):
        afrag(gP+4*k, gT+4+k, gM)
    for k in range(4):
        mfma(gAC, gP+4*k, gD+4*k, None if k == 0 else gAC)
    a(f"v_mul_f32 {v(LS)}, {v(gS3)}, {v(gS3+1)}")
    for k in range(1, 4): a(f"v_fmac_f32 {v(LS)}, {v(gS3+2*k)}, {v(gS3+2*k+1)}")
    ror("v_add_f32", LS, 8)
    xrow("v_add_f32", LS, gT+2)
    a(f"""v_and_b32 {v(gT+2)}, 7, v0
    v_lshlrev_b32 {v(gT+2)}, 5, {v(gT+2)}
    v_bfe_u32 {v(gT+3)}, v0, 4, 1
    v_lshl_add_u32 {v(gT+2)}, {v(gT+3)}, 4, {v(gT+2)}
    v_lshrrev_b32 {v(gT+3)}, 5, v0
    v_lshl_add_u32 {v(gT+2)}, {v(gT+3)}, 8, {v(gT+2)}
    s_lshl_b32 {sA}, {GW}, 9
    s_add_u32 {sA}, {sA}, {L_P3}
    v_add_u32 {v(gT+2)}, {sA}, {v(gT+2)}
    s_lshl_b32 {sA}, {GW}, 3
    s_add_u32 {sA}, {sA}, {L_S3}
    v_mov_b32 {v(gT+3)}, {sA}""")
    set_exec(*VALIDMASK)
    a(f"""ds_write_b128 {v(gT+2)}, {v(gAC,4)}
    s_mov_b64 exec, 1
    ds_write_b64 {v(gT+3)}, {v(MX,2)}
    ds_add_u32 {v(gCNT)}, {v(gONE)} offset:{C_C}
    s_mov_b64 exec, -1""")
    stamp(8)
    Lfe = a.label("fe")
    a(f"""s_cmp_lg_u32 {GW}, 0
    s_cbranch_scc1 {Lfe}
    s_cmp_lt_u32 {sI}, 14
    s_cbranch_scc1 {Lfe}
    s_mul_i32 {sQ}, {sXCD}, 18
    s_add_u32 {sQ}, {sQ}, 31
    s_sub_u32 {sQ}, {sQ}, {sI}
    s_lshl_b32 {sA}, {sQ}, 3
    v_lshlrev_b32 {v(gT)}, 1, {v(gG)}
    buffer_load_ushort {v(gT+2)}, {v(gT)}, {srd(RX)}, {sA} offen
    buffer_load_ushort {v(gT+3)}, {v(gT)}, {srd(RB2)}, {sA} offen
    v_mul_u32_u24 {v(gT+1)}, 2304, v0
    s_lshl_b32 {sC}, {sQ}, 4
    s_add_u32 {sD}, {sC}, {WS_S}
    s_add_u32 {sC}, {sC}, {WS_Y}
    v_mov_b32 {v(gT+5)}, 0xff""")
    FB = 128
    def fgather(n, sbase, last16):
        Lr = a.label("fg"); Dr = a.label("fgd")
        a(f"""s_add_u32 {sK0}, {sbase}, 147456
        s_add_u32 {sK1}, {sbase}, {2*147456}
        s_add_u32 {sK2}, {sbase}, {3*147456}
        s_mov_b32 {sSpin}, {cfg.spin_max}""")
        if last16:
            for k in range(4): a(f"v_and_b32 {v(FB+4*(n-1)+k)}, {sT[k]}, {v(gT+5)}")
        a(f"{Lr}:")
        so = [sbase, sK0, sK1, sK2]
        for k in range(n):
            if last16 and k == n-1:
                Ls = a.label("fgs")
                a(f"""s_mov_b64 {sEX}, exec
                s_and_b64 exec, exec, 0xffff
                s_cbranch_execz {Ls}""")
            a(f"buffer_load_dwordx4 {v(FB+4*k,4)}, {v(gT+1)}, {srd(RWS)}, {so[k]} offen sc1")
            if last16 and k == n-1:
                a(f"{Ls}:\ns_mov_b64 exec, {sEX}")
        a("s_waitcnt vmcnt(0)")
        tagchk(gT+4, FB, n)
        a(f"""v_cmp_ne_u32 vcc, 0, {v(gT+4)}
        s_and_b64 exec, exec, vcc
        s_cbranch_execz {Dr}
        s_sub_u32 {sSpin}, {sSpin}, 1
        s_cbranch_scc0 {Lr}
        {Dr}:
        s_mov_b64 exec, -1""")
        for k in range(1, n):
            for hlf in range(2):
                a(f"v_pk_add_f32 {v(FB+2*hlf,2)}, {v(FB+2*hlf,2)}, {v(FB+4*k+2*hlf,2)}")
        a(f"""v_permlane32_swap_b32 {v(FB)}, {v(FB+2)}
        v_permlane32_swap_b32 {v(FB+1)}, {v(FB+3)}
        v_add_f32 {v(FB)}, {v(FB)}, {v(FB+2)}
        v_add_f32 {v(FB+1)}, {v(FB+1)}, {v(FB+3)}
        v_permlane16_swap_b32 {v(FB)}, {v(FB+1)}
        v_add_f32 {v(FB)}, {v(FB)}, {v(FB+1)}""")
        for nn in (8, 4, 2, 1): ror("v_add_f32", FB, nn)
        bf16r(FB)
    fgather(3, sC, True)
    gY = gT+6
    a(f"""v_lshlrev_b32 {v(gT+3)}, 16, {v(gT+3)}
    v_lshlrev_b32 {v(gT+2)}, 16, {v(gT+2)}
    v_add_f32 {v(gY)}, {v(FB)}, {v(gT+3)}""")
    bf16r(gY)
    a(f"""v_mul_f32 {v(gY+1)}, {hx(f2u(-1.4426950408889634))}, {v(gY)}
    v_exp_f32 {v(gY+1)}, {v(gY+1)}
    v_add_f32 {v(gY+1)}, 1.0, {v(gY+1)}
    v_rcp_f32 {v(gY+1)}, {v(gY+1)}
    v_mul_f32 {v(gY)}, {v(gY)}, {v(gY+1)}""")
    bf16r(gY)
    fgather(4, sD, False)
    a(f"v_mul_f32 {v(FB)}, {v(FB)}, {v(gY)}")
    bf16r(FB)
    a(f"""v_add_f32 {v(FB)}, {v(FB)}, {v(gT+2)}
    v_cvt_pk_bf16_f32 {v(FB)}, {v(FB)}, {v(FB)}
    s_lshl_b32 {sA}, {sQ}, 3""")
    set_exec(0x00010001, 0x00010001)
    a(f"""buffer_store_short {v(FB)}, {v(gT)}, {srd(ROUT)}, {sA} offen
    s_cmp_lg_u32 {sQ}, 0
    s_cbranch_scc1 {Lfe}
    v_mov_b32 {v(FB+1)}, {sT[0]}
    s_mov_b64 exec, 1
    buffer_store_dword {v(FB+1)}, off, {srd(RWS)}, 0 sc1
    {Lfe}:""")
    stamp(9)
    flush_stamps(gT, gT+1, 10)
    a("L_end:\ns_endpgm\nL_code_end:")
    body = a.finish()
    hdr = open('cdna_kernels/' + NAME + '.s.ref').read().split('; Override')[0]
    hdr += "; Persistent single-launch kernel: 256 workgroups (one per CU), 4 stream waves + 4 attention waves.\n"
    hdr += f"; @launch grid=(256,1,1) block=(512,1,1) lds={L_END}\n"
    tail = f""".section .rodata,"a"
.p2align 6
.amdhsa_kernel {NAME}_kernel
  .amdhsa_next_free_vgpr 256
  .amdhsa_next_free_sgpr 102
  .amdhsa_accum_offset 256
  .amdhsa_group_segment_fixed_size 0
  .amdhsa_kernarg_size 112
  .amdhsa_user_sgpr_count 2
  .amdhsa_user_sgpr_kernarg_segment_ptr 1
  .amdhsa_system_sgpr_workgroup_id_x 1
.end_amdhsa_kernel
"""
    return hdr + body + tail, a.nnop

if __name__ == "__main__":
    cfg = Cfg()
    out = None
    for arg in sys.argv[1:]:
        if '=' in arg:
            k, val = arg.split('=')
            setattr(cfg, k, int(val))
        else: out = arg
    txt, nn = gen(cfg)
    open(out or f'cdna_kernels/{NAME}.s', 'w').write(txt)
    print("nops inserted:", nn, file=sys.stderr)
```

```python
import sys, struct
from asmlib import Asm
NAME = "recurrent_scan__compressed_kv_cla__dense_activation_gelu__decode"

def f2u(x): return struct.unpack('<I', struct.pack('<f', x))[0]
def hx(x): return f"0x{x & 0xffffffff:08x}"

class Cfg:
    stamps = False
    mimic = True
    spin_max = 20000
    lspin_max = 400000
    code_prefetch = True
    dma_win = 0
    prio = True
    amp_role = -1; amp_k = 0; amp_b = 255

WS_Q = 0x1000; WS_S = 0x11000; WS_Y = 0xA1000; WS_IN = 0x100000; INB = 17408
WS_TS = 0x600000; WS_SIZE = 0x700000
ROW = 1056
L_QF = 135168; L_RED = 135168
L_XN = 153600; L_QP = 156160; L_P3 = 160256; L_PS = 162304; L_HP = 162816
L_QV = 163328; L_S3 = 163584; L_CNT = 163648; L_END = 163712
C_A, C_Q, C_QC, C_L, C_P, C_C, C_H, C_Y, C_D, C_S = [4*k for k in range(10)]
sB, sW, sXCD, sI, sH, sJ = 's2', 's3', 's4', 's5', 's6', 's7'
def srd(n): return f"s[{n}:{n+3}]"
RX, RWS, RWQ, RWUK, RWUV, RWO, RW1, RW2, RB1, RCKV, RB2, ROUT, RCODE = [8+4*k for k in range(13)]
sT = ['s60','s61','s62','s63']
sHH, sP, sU, sQ = 's64','s65','s66','s67'
sA, sBb, sC, sD, sSpin, sTmp = 's68','s69','s70','s71','s72','s73'
sK0, sK1, sK2, sK3 = 's74','s75','s76','s77'
sEX = 's[78:79]'
STAMP0 = 80
VALIDMASK = (0x00ff00ff, 0xff00ff00)

def v(n, k=1): return f"v{n}" if k == 1 else f"v[{n}:{n+k-1}]"

def gen(cfg):
    a = Asm()
    nstamp = [0]
    def stamp(k):
        if cfg.stamps: a(f"s_memrealtime s[{STAMP0+2*k}:{STAMP0+2*k+1}]")
    def flush_stamps(vt, vo, n):
        if not cfg.stamps: return
        if cfg.amp_role >= 0:
            L = a.label("amp"); D = a.label("ampd")
            a(f"""s_waitcnt lgkmcnt(0)
            s_cmp_lg_u32 {sB}, {cfg.amp_b}
            s_cbranch_scc1 {D}
            s_cmp_lg_u32 {sW}, {cfg.amp_role}
            s_cbranch_scc1 {D}
            s_sub_u32 {sA}, s{STAMP0+2*cfg.amp_k}, s{STAMP0}
            s_mul_i32 {sA}, {sA}, 10
            s_min_u32 {sA}, {sA}, 100000
            {L}:
            s_memrealtime s[{STAMP0+20}:{STAMP0+21}]
            s_waitcnt lgkmcnt(0)
            s_sub_u32 {sC}, s{STAMP0+20}, s{STAMP0+18}
            s_cmp_lt_u32 {sC}, {sA}
            s_cbranch_scc1 {L}
            {D}:""")
            return
        a("s_mov_b64 exec, -1\ns_waitcnt lgkmcnt(0)")
        a(f"v_mov_b32 {v(vt)}, 0")
        for k in range(n): a(f"v_writelane_b32 {v(vt)}, s{STAMP0+2*k}, {k}")
        a(f"""s_lshl_b32 {sA}, {sB}, 3
        s_add_u32 {sA}, {sA}, {sW}
        s_lshl_b32 {sA}, {sA}, 6
        s_add_u32 {sA}, {sA}, {WS_TS}
        v_lshlrev_b32 {v(vo)}, 2, v0
        s_mov_b64 exec, 0xffff
        buffer_store_dword {v(vt)}, {v(vo)}, {srd(RWS)}, {sA} offen""")
    def set_exec(lo, hi):
        a(f"s_mov_b32 exec_lo, {hx(lo)}\ns_mov_b32 exec_hi, {hx(hi)}")
    def signal(cnt, vone, vcnt):
        a(f"s_mov_b64 exec, 1\nds_add_u32 {v(vcnt)}, {v(vone)} offset:{cnt}\ns_mov_b64 exec, -1")
    def lwait(cnt, vt, vcnt, sleep=0):
        L = a.label("lw"); D = a.label("lwd")
        a(f"""s_mov_b32 {sSpin}, {cfg.lspin_max}
        {L}:
        ds_read_b32 {v(vt)}, {v(vcnt)} offset:{cnt}
        s_waitcnt lgkmcnt(0)
        v_readfirstlane_b32 {sTmp}, {v(vt)}
        s_cmp_ge_u32 {sTmp}, 4
        s_cbranch_scc1 {D}""")
        if sleep: a(f"s_sleep {sleep}")
        a(f"""s_sub_u32 {sSpin}, {sSpin}, 1
        s_cbranch_scc0 {L}
        {D}:""")
    def xrow(op, r, t):
        a(f"""v_mov_b32 {v(t)}, {v(r)}
        v_permlane16_swap_b32 {v(r)}, {v(t)}
        {op} {v(r)}, {v(r)}, {v(t)}
        v_mov_b32 {v(t)}, {v(r)}
        v_permlane32_swap_b32 {v(r)}, {v(t)}
        {op} {v(r)}, {v(r)}, {v(t)}""")
    def ror(op, r, n):
        a(f"{op}_dpp {v(r)}, {v(r)}, {v(r)} row_ror:{n} row_mask:0xf bank_mask:0xf")
    def allsum(r, t):
        for n in (8, 4, 2, 1): ror("v_add_f32", r, n)
        xrow("v_add_f32", r, t)
    def bf16r(r):
        a(f"v_cvt_pk_bf16_f32 {v(r)}, {v(r)}, {v(r)}\nv_and_b32 {v(r)}, 0xffff0000, {v(r)}")
    def mfma(d, A, B, c=None):
        a(f"v_mfma_f32_16x16x32_bf16 {v(d,4)}, {v(A,4)}, {v(B,4)}, {'0' if c is None else v(c,4)}")
    def masks(vM, vt):
        a(f"""v_and_b32 {v(vt)}, 1, v0
        v_mov_b32 {v(vt+1)}, 0xffff
        v_lshlrev_b32 {v(vt)}, 4, {v(vt)}
        v_lshlrev_b32 {v(vt)}, {v(vt)}, {v(vt+1)}
        v_bfe_u32 {v(vt+1)}, v0, 1, 2""")
        for r in range(4):
            a(f"""v_cmp_eq_u32 vcc, {r}, {v(vt+1)}
            v_cndmask_b32 {v(vM+r)}, 0, {v(vt)}, vcc""")
    def afrag(dst, dup, vM):
        for r in range(4): a(f"v_and_b32 {v(dst+r)}, {v(dup)}, {v(vM+r)}")
    def tagchk(acc, base, n):
        first = True
        for gidx in range(n):
            for k in range(4):
                if first:
                    a(f"v_xor_b32 {v(acc)}, {sT[k]}, {v(base)}"); first = False
                else:
                    a(f"v_bitop3_b32 {v(acc)}, {v(acc)}, {v(base+4*gidx+k)}, {sT[k]} bitop3:0xf6")
        a(f"v_and_b32 {v(acc)}, 0xff, {v(acc)}")

    a(f""".amdgcn_target "amdgcn-amd-amdhsa--gfx950"
    .text
    .globl {NAME}_kernel
    .p2align 8
    .type {NAME}_kernel,@function
    {NAME}_kernel:""")
    a("L_code_begin:")
    a(f"s_cmp_ge_u32 {sB}, 256\ns_cbranch_scc1 L_end")
    stamp(0)
    ptrs = [(RX,0,1152),(RWQ,16,4718592),(RWUK,24,4194304),(RWS,104,WS_SIZE),(RCKV,8,16777216),
            (RWUV,32,4194304),(RWO,40,4718592),(RW1,56,5308416),(RW2,72,5308416),(RB1,64,9216),
            (RB2,80,1152),(ROUT,88,1152)]
    for r, off, sz in ptrs: a(f"s_load_dwordx2 s[{r}:{r+1}], s[0:1], {off}")
    a(f"""v_lshrrev_b32 v1, 6, v0
    v_and_b32 v0, 63, v0
    v_readfirstlane_b32 {sW}, v1""")
    for r, off, sz in ptrs: a(f"s_mov_b32 s{r+2}, {sz}\ns_mov_b32 s{r+3}, 0x20000")
    a(f"""s_and_b32 {sXCD}, {sB}, 7
    s_lshr_b32 {sI}, {sB}, 3
    s_lshr_b32 {sHH}, {sI}, 4
    s_and_b32 {sJ}, {sI}, 7
    s_lshl_b32 {sH}, {sHH}, 4
    s_lshl_b32 {sA}, {sXCD}, 1
    s_add_u32 {sH}, {sH}, {sA}
    s_bfe_u32 {sA}, {sI}, 0x10003
    s_add_u32 {sH}, {sH}, {sA}
    s_cmp_lt_u32 {sW}, 4
    s_cbranch_scc1 L_G""")

    sSW = sW
    SW = sK3
    vQ, vO, vM, vCNT, vONE, vDO, vRS = 1, 2, 4, 8, 9, 10, 11
    vT = 12
    vA0, vA1, vAC = 20, 24, 28
    vX = 36
    vE = 54; vB1 = 55; vWO = 56; vFF = 57; vL16 = 58; vL4 = 59
    vW2 = 60; vWB = 96; vW1 = 112; vWq = 112; vWO1 = 148
    a(f"""s_sub_u32 {SW}, {sW}, 4
    v_lshrrev_b32 {v(vQ)}, 3, v0
    v_and_b32 {v(vO)}, 7, v0
    v_lshlrev_b32 {v(vL16)}, 4, v0
    v_lshlrev_b32 {v(vL4)}, 2, v0
    v_mul_u32_u24 {v(vT)}, 147456, {v(vQ)}
    v_lshl_add_u32 {v(vT)}, {v(vO)}, 4, {v(vT)}
    v_and_b32 {v(vT+1)}, 15, v0
    v_lshlrev_b32 {v(vT+1)}, 13, {v(vT+1)}
    v_lshrrev_b32 {v(vT+2)}, 4, v0
    v_lshl_add_u32 {v(vT+1)}, {v(vT+2)}, 4, {v(vT+1)}
    s_mul_i32 {sA}, {SW}, {144*8192}
    s_lshl_b32 {sBb}, {sH}, 8
    s_add_u32 {sA}, {sA}, {sBb}
    s_lshl_b32 {sC}, {sJ}, 2
    s_add_u32 {sC}, {sC}, {SW}
    s_lshl_b32 {sC}, {sC}, 17
    s_add_u32 {sC}, {sC}, {sBb}
    s_lshl_b32 {sD}, {sH}, 3
    s_add_u32 {sD}, {sD}, {sJ}
    s_mul_i32 {sD}, {sD}, {INB}
    s_add_u32 {sD}, {sD}, {WS_IN}
    s_waitcnt lgkmcnt(0)
    buffer_load_dwordx4 {v(vX,4)}, {v(vL16)}, {srd(RX)}, 0 offen
    buffer_load_dword {v(vX+4)}, {v(vL4)}, {srd(RX)}, 0 offen offset:1024
    buffer_load_dword {v(vE)}, off, {srd(RWS)}, 0 sc1""")
    for rb in range(18):
        for cb in range(2):
            a(f"buffer_load_dwordx4 {v(vWq+8*rb+4*cb,4)}, {v(vT)}, {srd(RWQ)}, {sA} offen offset:{128*cb}")
        if rb < 17: a(f"s_add_u32 {sA}, {sA}, 8192")
    for ks in range(4):
        a(f"buffer_load_dwordx4 {v(vWB+4*ks,4)}, {v(vT+1)}, {srd(RWUK)}, {sC} offen offset:{64*ks}")
    for k in range(4): a(f"v_mov_b32 {v(vA0+k)}, -1")
    a(f"""s_lshl_b32 {sA}, {SW}, 12
    s_add_u32 {sA}, {sA}, {sD}
    s_lshl_b32 {sC}, {SW}, 8
    s_add_u32 {sC}, {sC}, {sD}
    s_add_u32 {sC}, {sC}, 16384""")
    for k in range(4):
        a(f"buffer_store_dwordx4 {v(vA0,4)}, {v(vL16)}, {srd(RWS)}, {sA} offen offset:{1024*k} sc1")
    a(f"buffer_store_dword {v(vA0)}, {v(vL4)}, {srd(RWS)}, {sC} offen sc1")
    stamp(1)
    a("s_barrier")
    masks(vM, vT)
    a(f"""v_mov_b32 {v(vCNT)}, {L_CNT}
    v_mov_b32 {v(vONE)}, 1
    v_mov_b32 {v(vFF)}, 0xff
    v_lshrrev_b32 {v(vRS)}, 5, v0
    v_bfe_u32 {v(vT)}, v0, 4, 1
    v_lshlrev_b32 {v(vT)}, 4, {v(vT)}
    v_lshl_add_u32 {v(vDO)}, {v(vO)}, 5, {v(vT)}""")
    F = 42
    a("s_waitcnt vmcnt(45)")
    a(f"v_readfirstlane_b32 {sT[0]}, {v(vE)}")
    for k in range(5):
        a(f"v_lshlrev_b32 {v(F+2*k)}, 16, {v(vX+k)}\nv_and_b32 {v(F+2*k+1)}, 0xffff0000, {v(vX+k)}")
    a(f"""s_add_u32 {sT[0]}, {sT[0]}, 1
    s_lshr_b32 {sT[1]}, {sT[0]}, 8
    s_lshr_b32 {sT[2]}, {sT[0]}, 16
    s_lshr_b32 {sT[3]}, {sT[0]}, 24""")
    a(f"v_add_f32 {v(vT)}, {v(F)}, {v(F+1)}")
    for k in range(2, 10): a(f"v_add_f32 {v(vT)}, {v(vT)}, {v(F+k)}")
    allsum(vT, vT+1)
    a(f"""v_mul_f32 {v(vT)}, {hx(f2u(1.0/576))}, {v(vT)}
    v_cmp_gt_u32 vcc, 32, v0""")
    a(f"v_sub_f32 {v(vT+3)}, {v(F)}, {v(vT)}\nv_mul_f32 {v(vT+2)}, {v(vT+3)}, {v(vT+3)}")
    for k in range(1, 10):
        a(f"v_sub_f32 {v(vT+3)}, {v(F+k)}, {v(vT)}")
        if k >= 8: a(f"v_cndmask_b32 {v(vT+3)}, 0, {v(vT+3)}, vcc")
        a(f"v_fmac_f32 {v(vT+2)}, {v(vT+3)}, {v(vT+3)}")
    allsum(vT+2, vT+1)
    a(f"v_mul_f32 {v(vT+2)}, {hx(f2u(1.0/576))}, {v(vT+2)}")
    bf16r(vT+2); bf16r(vT)
    a(f"v_add_f32 {v(vT+2)}, {hx(f2u(1e-5))}, {v(vT+2)}")
    bf16r(vT+2)
    a(f"v_sqrt_f32 {v(vT+2)}, {v(vT+2)}")
    bf16r(vT+2)
    a(f"v_rcp_f32 {v(vT+2)}, {v(vT+2)}")
    for k in range(10): a(f"v_sub_f32 {v(F+k)}, {v(F+k)}, {v(vT)}")
    for k in range(5):
        a(f"""v_cvt_pk_bf16_f32 {v(vT+3)}, {v(F+2*k)}, {v(F+2*k+1)}
        v_lshlrev_b32 {v(F+2*k)}, 16, {v(vT+3)}
        v_and_b32 {v(F+2*k+1)}, 0xffff0000, {v(vT+3)}""")
    for k in range(10):
        a(f"v_mul_f32 {v(F+k)}, {v(F+k)}, {v(vT+2)}\nv_cvt_pk_bf16_f32 {v(F+k)}, {v(F+k)}, {v(F+k)}")
    a(f"""v_lshlrev_b32 {v(vT)}, 5, v0
    v_lshlrev_b32 {v(vT+1)}, 3, v0
    v_add_u32 {v(vT)}, {L_XN}, {v(vT)}
    v_add_u32 {v(vT+1)}, {L_XN+2048}, {v(vT+1)}
    ds_write_b128 {v(vT)}, {v(F,4)}
    ds_write_b128 {v(vT)}, {v(F+4,4)} offset:16
    ds_write_b64 {v(vT+1)}, {v(F+8,2)}
    s_mul_i32 {sA}, {SW}, 576
    s_add_u32 {sA}, {sA}, {L_XN}
    v_mul_u32_u24 {v(vT)}, 72, {v(vQ)}
    v_add_u32 {v(vT)}, {sA}, {v(vT)}""")
    for k in range(9): a(f"ds_read_b64 {v(vX+2*k,2)}, {v(vT)} offset:{8*k}")
    a("s_waitcnt lgkmcnt(0)")
    stamp(2)
    for rb in range(18):
        A = vA0 if rb % 2 == 0 else vA1
        afrag(A, vX+rb, vM)
        a(f"s_waitcnt vmcnt({43-2*rb})")
        for cb in range(2):
            mfma(vAC+4*cb, A, vWq+8*rb+4*cb, None if rb == 0 else vAC+4*cb)
    a(f"""s_lshl_b32 {sA}, {SW}, 10
    s_add_u32 {sA}, {sA}, {L_QP}
    v_lshl_add_u32 {v(vT)}, {v(vRS)}, 9, {v(vDO)}
    v_add_u32 {v(vT)}, {sA}, {v(vT)}
    v_lshlrev_b32 {v(vT+1)}, 3, v0
    v_add_u32 {v(vT+1)}, {L_QP}, {v(vT+1)}""")
    set_exec(*VALIDMASK)
    a(f"ds_write_b128 {v(vT)}, {v(vAC,4)}\nds_write_b128 {v(vT)}, {v(vAC+4,4)} offset:256")
    signal(C_A, vONE, vCNT)
    stamp(3)
    lwait(C_A, vT+2, vCNT)
    for k in range(8): a(f"ds_read_b64 {v(vX+2*k,2)}, {v(vT+1)} offset:{512*k}")
    a(f"""v_add_u32 {v(vT+2)}, {L_QV}, {v(vL4)}
    v_lshrrev_b32 {v(vT+3)}, 4, v0
    v_lshlrev_b32 {v(vT+3)}, 4, {v(vT+3)}
    v_add_u32 {v(vT+4)}, {L_QV}, {v(vT+3)}
    s_waitcnt lgkmcnt(0)""")
    for step in (1, 2, 4):
        for k in range(0, 8, 2*step):
            a(f"v_pk_add_f32 {v(vX+2*k,2)}, {v(vX+2*k,2)}, {v(vX+2*(k+step),2)}")
    a(f"""v_cvt_pk_bf16_f32 {v(vX)}, {v(vX)}, {v(vX+1)}
    ds_write_b32 {v(vT+2)}, {v(vX)}""")
    for ks in range(4): a(f"ds_read_b128 {v(vX+2+4*ks,4)}, {v(vT+4)} offset:{64*ks}")
    a(f"""s_lshl_b32 {sA}, {sH}, 5
    s_lshl_b32 {sBb}, {sJ}, 2
    s_add_u32 {sA}, {sA}, {sBb}
    s_add_u32 {sA}, {sA}, {SW}
    s_lshl_b32 {sA}, {sA}, 6
    s_add_u32 {sA}, {sA}, {WS_Q}
    s_waitcnt vmcnt(5) lgkmcnt(0)""")
    for ks in range(4): mfma(vAC, vWB+4*ks, vX+2+4*ks, None if ks == 0 else vAC)
    a(f"""v_and_b32 {v(vT)}, 15, v0
    v_lshlrev_b32 {v(vT)}, 11, {v(vT)}
    v_lshl_add_u32 {v(vT)}, {v(vT+3)}, 1, {v(vT)}
    s_lshl_b32 {sC}, {sHH}, 15
    s_lshl_b32 {sBb}, {SW}, 9
    s_add_u32 {sC}, {sC}, {sBb}
    s_add_u32 {sC}, {sC}, {WS_Q}""")
    for k in range(4): a(f"v_bfi_b32 {v(vAC+k)}, {v(vFF)}, {sT[k]}, {v(vAC+k)}")
    a("s_waitcnt vmcnt(0)")
    set_exec(0x00010001, 0x00010001)
    a(f"buffer_store_dwordx4 {v(vAC,4)}, {v(vT+3)}, {srd(RWS)}, {sA} offen sc1")
    a("s_mov_b64 exec, -1")
    stamp(4)
    G = vW2
    Lq = a.label("gq"); Dq = a.label("gqd")
    a(f"s_mov_b32 {sSpin}, {cfg.spin_max}\n{Lq}:")
    for t in range(4):
        for u in range(2):
            a(f"buffer_load_dwordx4 {v(G+8*t+4*u,4)}, {v(vT)}, {srd(RWS)}, {sC} offen offset:{128*t+16*u} sc1")
    a("s_waitcnt vmcnt(0)")
    tagchk(vT+1, G, 8)
    a(f"""v_cmp_ne_u32 vcc, 0, {v(vT+1)}
    s_and_b64 exec, exec, vcc
    s_cbranch_execz {Dq}
    s_sub_u32 {sSpin}, {sSpin}, 1
    s_cbranch_scc0 {Lq}
    {Dq}:
    s_mov_b64 exec, -1
    s_lshl_b32 {sA}, {SW}, 12
    s_add_u32 {sA}, {sA}, {L_QF}
    v_add_u32 {v(vT+1)}, {sA}, {v(vL16)}""")
    for t in range(4):
        for k in range(4): a(f"v_cvt_pk_bf16_f32 {v(G+8*t+k)}, {v(G+8*t+2*k)}, {v(G+8*t+2*k+1)}")
        a(f"ds_write_b128 {v(vT+1)}, {v(G+8*t,4)} offset:{1024*t}")
    signal(C_Q, vONE, vCNT)
    stamp(5)
    Lnf1 = a.label("nf1"); Lnf2 = a.label("nf2"); Lnf3 = a.label("nf3")
    a(f"""s_mul_i32 {sU}, {sXCD}, 18
    s_add_u32 {sU}, {sU}, {sI}
    s_cmp_ge_u32 {sI}, 18
    s_cbranch_scc1 {Lnf1}
    s_lshl_b32 {sA}, {sU}, 2
    s_add_u32 {sA}, {sA}, {SW}
    s_mul_i32 {sC}, {sA}, {8*1152}
    s_lshl_b32 {sA}, {sA}, 4
    v_lshlrev_b32 {v(vT)}, 1, {v(vQ)}
    buffer_load_ushort {v(vB1)}, {v(vT)}, {srd(RB1)}, {sA} offen
    v_lshrrev_b32 {v(vT+1)}, 2, v0
    v_mul_u32_u24 {v(vT+2)}, 82944, {v(vT+1)}
    v_and_b32 {v(vT+3)}, 3, v0
    v_lshl_add_u32 {v(vT+2)}, {v(vT+3)}, 4, {v(vT+2)}
    s_mul_i32 {sA}, {SW}, {144*9216}
    s_lshl_b32 {sBb}, {sU}, 6
    s_add_u32 {sA}, {sA}, {sBb}""")
    for r in range(9):
        a(f"buffer_load_dwordx4 {v(vW1+4*r,4)}, {v(vT+2)}, {srd(RW1)}, {sA} offen")
        if r < 8: a(f"s_add_u32 {sA}, {sA}, 9216")
    a(f"""v_mul_u32_u24 {v(vT+2)}, 1152, {v(vQ)}
    v_lshl_add_u32 {v(vT+2)}, {v(vO)}, 4, {v(vT+2)}
    s_waitcnt lgkmcnt(0)""")
    for cb in range(9):
        a(f"buffer_load_dwordx4 {v(vW2+4*cb,4)}, {v(vT+2)}, {srd(RW2)}, {sC} offen offset:{128*cb}")
    a(f"{Lnf1}:")
    a(f"""v_bfe_u32 {v(vT)}, {v(vQ)}, 1, 1
    v_lshlrev_b32 {v(vT)}, 4, {v(vT)}
    v_lshrrev_b32 {v(vT+1)}, 2, {v(vQ)}
    v_lshl_add_u32 {v(vT)}, {v(vT+1)}, 2, {v(vT)}
    v_and_b32 {v(vT+1)}, 1, {v(vQ)}
    v_lshl_add_u32 {v(vT)}, {v(vT+1)}, 1, {v(vT)}
    v_lshlrev_b32 {v(vT)}, 13, {v(vT)}
    v_lshl_add_u32 {v(vT)}, {v(vO)}, 4, {v(vT)}
    s_lshl_b32 {sA}, {sJ}, 6
    s_lshr_b32 {sBb}, {SW}, 1
    s_lshl_b32 {sBb}, {sBb}, 5
    s_add_u32 {sA}, {sA}, {sBb}
    s_and_b32 {sBb}, {SW}, 1
    s_lshl_b32 {sBb}, {sBb}, 3
    s_add_u32 {sA}, {sA}, {sBb}
    s_lshl_b32 {sA}, {sA}, 13
    s_lshl_b32 {sBb}, {sH}, 8
    s_add_u32 {sA}, {sA}, {sBb}
    s_add_u32 {sBb}, {sA}, 8192""")
    for b in range(2):
        for cb in range(2):
            a(f"buffer_load_dwordx4 {v(vWB+8*b+4*cb,4)}, {v(vT)}, {srd(RWUV)}, {sA if b == 0 else sBb} offen offset:{128*cb}")
    a(f"""v_mul_u32_u24 {v(vWO)}, 4608, {v(vQ)}
    v_lshl_add_u32 {v(vWO)}, {v(vO)}, 4, {v(vWO)}
    s_lshl_b32 {sK0}, {sH}, 2
    s_add_u32 {sK0}, {sK0}, {SW}
    s_mul_i32 {sK0}, {sK0}, {32*1152}
    s_add_u32 {sK1}, {sK0}, 2304""")
    def wo_reg(b, cb): return (vWO1 + 4*(9*b+cb)) if b < 3 else (vW1 + 4*cb)
    def wo_load(b):
        for cb in range(9):
            a(f"buffer_load_dwordx4 {v(wo_reg(b,cb),4)}, {v(vWO)}, {srd(RWO)}, {sK0 if b < 2 else sK1} offen offset:{(b%2)*1152+128*cb}")
    for b in range(3): wo_load(b)
    vRA = 3
    a(f"""s_mul_i32 {sA}, {SW}, 4608
    s_add_u32 {sA}, {sA}, {L_RED}
    v_mul_u32_u24 {v(vRA)}, 2304, {v(vRS)}
    v_add3_u32 {v(vRA)}, {v(vRA)}, {v(vDO)}, {sA}
    s_cmp_ge_u32 {sI}, 18
    s_cbranch_scc1 {Lnf2}""")
    a(f"""s_mul_i32 {sA}, {SW}, 576
    s_add_u32 {sA}, {sA}, {L_XN}
    v_lshrrev_b32 {v(vT)}, 2, v0
    v_mul_u32_u24 {v(vT)}, 36, {v(vT)}
    v_add_u32 {v(vT)}, {sA}, {v(vT)}""")
    for k in range(4): a(f"ds_read2_b32 {v(vX+2*k,2)}, {v(vT)} offset0:{2*k} offset1:{2*k+1}")
    a(f"ds_read_b32 {v(vX+8)}, {v(vT)} offset:32")
    for k in range(8): a(f"v_mov_b32 {v(vAC+k)}, 0")
    a("s_waitcnt lgkmcnt(0)")
    for r in range(9):
        a(f"v_and_b32 {v(vX+9+r)}, 0xffff0000, {v(vX+r)}\nv_and_b32 {v(vX+r)}, 0xffff, {v(vX+r)}")
    for r in range(9):
        a(f"s_waitcnt vmcnt({8-r+9+4+27})")
        for k in range(4):
            a(f"v_dot2c_f32_bf16 {v(vAC+2*k)}, {v(vW1+4*r+k)}, {v(vX+r)}")
            a(f"v_dot2c_f32_bf16 {v(vAC+2*k+1)}, {v(vW1+4*r+k)}, {v(vX+9+r)}")
    wo_load(3)
    for k in range(4): a(f"v_permlane32_swap_b32 {v(vAC+k)}, {v(vAC+k+4)}")
    for k in range(4): a(f"v_add_f32 {v(vAC+k)}, {v(vAC+k)}, {v(vAC+k+4)}")
    for k in range(2): a(f"v_permlane16_swap_b32 {v(vAC+k)}, {v(vAC+k+2)}")
    for k in range(2): a(f"v_add_f32 {v(vAC+k)}, {v(vAC+k)}, {v(vAC+k+2)}")
    for n in (8, 4):
        for k in range(2): ror("v_add_f32", vAC+k, n)
    a(f"""v_and_b32 {v(vT)}, 3, v0
    v_lshlrev_b32 {v(vT)}, 7, {v(vT)}
    v_lshrrev_b32 {v(vT+1)}, 4, v0
    v_lshl_add_u32 {v(vT)}, {v(vT+1)}, 5, {v(vT)}
    s_lshl_b32 {sA}, {SW}, 2
    s_add_u32 {sA}, {sA}, {L_HP}
    v_add_u32 {v(vT)}, {sA}, {v(vT)}
    ds_write2_b32 {v(vT)}, {v(vAC)}, {v(vAC+1)} offset0:0 offset1:4""")
    signal(C_H, vONE, vCNT)
    a(f"""s_lshl_b32 {sA}, {SW}, 7
    s_add_u32 {sA}, {sA}, {L_HP}
    v_lshl_add_u32 {v(vT)}, {v(vQ)}, 4, {sA}
    v_lshlrev_b32 {v(vB1)}, 16, {v(vB1)}""")
    lwait(C_H, vT+1, vCNT)
    a(f"""ds_read_b128 {v(vAC,4)}, {v(vT)}
    s_waitcnt lgkmcnt(0)
    v_add_f32 {v(vAC)}, {v(vAC)}, {v(vAC+1)}
    v_add_f32 {v(vAC+2)}, {v(vAC+2)}, {v(vAC+3)}
    v_add_f32 {v(vAC)}, {v(vAC)}, {v(vAC+2)}""")
    bf16r(vAC)
    a(f"v_add_f32 {v(vAC)}, {v(vAC)}, {v(vB1)}")
    bf16r(vAC)
    K = -2.0 * 1.4426950408889634 * 0.7978845608028654
    a(f"""v_mul_f32 {v(vAC+1)}, {v(vAC)}, {v(vAC)}
    v_mov_b32 {v(vAC+2)}, {hx(f2u(K))}
    v_fmac_f32 {v(vAC+2)}, {hx(f2u(K*0.044715))}, {v(vAC+1)}
    v_mul_f32 {v(vAC+2)}, {v(vAC+2)}, {v(vAC)}
    v_exp_f32 {v(vAC+2)}, {v(vAC+2)}
    v_add_f32 {v(vAC+2)}, 1.0, {v(vAC+2)}
    v_rcp_f32 {v(vAC+2)}, {v(vAC+2)}
    v_mul_f32 {v(vAC)}, {v(vAC)}, {v(vAC+2)}
    v_cvt_pk_bf16_f32 {v(vAC)}, {v(vAC)}, {v(vAC)}""")
    afrag(vT+4, vAC, vM)
    vY = 20
    for cb in range(9):
        a(f"s_waitcnt vmcnt({8-cb+40})")
        mfma(vY+4*cb, vT+4, vW2+4*cb)
    lwait(C_QC, vT+1, vCNT)
    def red_publish(acc, cnt, wsbase, sidx, stampk):
        set_exec(*VALIDMASK)
        for cb in range(9): a(f"ds_write_b128 {v(vRA)}, {v(acc+4*cb,4)} offset:{256*cb}")
        signal(cnt, vONE, vCNT)
        Lsk = a.label("rsk")
        a(f"""s_cmp_eq_u32 {SW}, 3
        s_cbranch_scc1 {Lsk}
        s_lshl_b32 {sA}, {SW}, 10
        v_add_u32 {v(vT)}, {sA}, {v(vL16)}
        v_add_u32 {v(vT+2)}, {L_RED}, {v(vT)}
        s_mul_i32 {sC}, {sidx}, 2304
        s_add_u32 {sC}, {sC}, {wsbase}""")
        lwait(cnt, vT+1, vCNT)
        a(f"v_cmp_gt_u32 vcc, 2304, {v(vT)}\ns_mov_b64 exec, vcc")
        for k in range(8): a(f"ds_read_b128 {v(acc+4*k,4)}, {v(vT+2)} offset:{2304*k}")
        for step, w in ((1, None), (2, None), (4, None)):
            for k in range(0, 8, 2*step):
                if step == 1: a(f"s_waitcnt lgkmcnt({6-k})")
                for hlf in range(2):
                    a(f"v_pk_add_f32 {v(acc+4*k+2*hlf,2)}, {v(acc+4*k+2*hlf,2)}, {v(acc+4*(k+step)+2*hlf,2)}")
        for k in range(4): a(f"v_bfi_b32 {v(acc+k)}, {v(vFF)}, {sT[k]}, {v(acc+k)}")
        a(f"""buffer_store_dwordx4 {v(acc,4)}, {v(vT)}, {srd(RWS)}, {sC} offen sc1
        s_mov_b64 exec, -1
        {Lsk}:""")
    red_publish(vY, C_Y, WS_Y, sU, None)
    a(f"s_branch {Lnf3}\n{Lnf2}:")
    wo_load(3)
    a(f"{Lnf3}:")
    stamp(6)
    a(f"""s_lshl_b32 {sA}, {SW}, 6
    s_add_u32 {sA}, {sA}, {L_P3}
    v_lshl_add_u32 {v(vT)}, {v(vQ)}, 3, {sA}
    v_mov_b32 {v(vT+2)}, {L_S3}
    s_lshl_b32 {sA}, {SW}, 10
    s_add_u32 {sA}, {sA}, {L_QP}
    v_lshl_add_u32 {v(vT+3)}, {v(vRS)}, 9, {v(vDO)}
    v_add_u32 {v(vT+3)}, {sA}, {v(vT+3)}
    s_lshl_b32 {sA}, {SW}, 7
    s_add_u32 {sA}, {sA}, {L_QP}
    v_lshl_add_u32 {v(vT+4)}, {v(vQ)}, 4, {sA}""")
    lwait(C_C, vT+1, vCNT, sleep=1)
    stamp(7)
    ST = 36; PT = 60
    a(f"ds_read_b128 {v(ST,4)}, {v(vT+2)}\nds_read_b128 {v(ST+4,4)}, {v(vT+2)} offset:16")
    for k in range(8): a(f"ds_read_b64 {v(PT+2*k,2)}, {v(vT)} offset:{256*k}")
    a(f"""s_waitcnt lgkmcnt(8)
    v_max_f32 {v(44)}, {v(ST)}, {v(ST+2)}
    v_max3_f32 {v(44)}, {v(44)}, {v(ST+4)}, {v(ST+6)}""")
    for k in range(4): a(f"v_sub_f32 {v(ST+2*k)}, {v(ST+2*k)}, {v(44)}")
    for k in range(4): a(f"v_exp_f32 {v(ST+2*k)}, {v(ST+2*k)}")
    a(f"v_mul_f32 {v(45)}, {v(ST)}, {v(ST+1)}")
    for k in range(1, 4): a(f"v_fmac_f32 {v(45)}, {v(ST+2*k)}, {v(ST+2*k+1)}")
    a(f"v_rcp_f32 {v(45)}, {v(45)}\ns_waitcnt lgkmcnt(0)")
    for k in range(4): a(f"v_pk_add_f32 {v(PT+4*k,2)}, {v(PT+4*k,2)}, {v(PT+4*k+2,2)}")
    for b in range(2):
        a(f"v_mul_f32 {v(46+b)}, {v(ST)}, {v(PT+b)}")
        for k in range(1, 4): a(f"v_fmac_f32 {v(46+b)}, {v(ST+2*k)}, {v(PT+4*k+b)}")
    for b in range(2):
        a(f"v_mul_f32 {v(46+b)}, {v(46+b)}, {v(45)}\nv_cvt_pk_bf16_f32 {v(46+b)}, {v(46+b)}, {v(46+b)}")
    afrag(vA0, 46, vM); afrag(vA1, 47, vM)
    a("s_waitcnt vmcnt(36)")
    for b in range(2):
        for cb in range(2):
            mfma(vAC+4*cb, vA0 if b == 0 else vA1, vWB+8*b+4*cb, None if b == 0 else vAC+4*cb)
    set_exec(*VALIDMASK)
    a(f"ds_write_b128 {v(vT+3)}, {v(vAC,4)}\nds_write_b128 {v(vT+3)}, {v(vAC+4,4)} offset:256")
    signal(C_D, vONE, vCNT)
    lwait(C_D, vT+1, vCNT)
    CP = 20
    for k in range(8): a(f"ds_read_b128 {v(CP+4*k,4)}, {v(vT+4)} offset:{512*k}")
    for step in (1, 2, 4):
        for k in range(0, 8, 2*step):
            if step == 1: a(f"s_waitcnt lgkmcnt({6-k})")
            for hlf in range(2):
                a(f"v_pk_add_f32 {v(CP+4*k+2*hlf,2)}, {v(CP+4*k+2*hlf,2)}, {v(CP+4*(k+step)+2*hlf,2)}")
    for b in range(4): a(f"v_cvt_pk_bf16_f32 {v(CP+b)}, {v(CP+b)}, {v(CP+b)}")
    for b in range(4): afrag(CP+4+4*b, CP+b, vM)
    vS = vW2
    for b in range(4):
        for cb in range(9):
            a(f"s_waitcnt vmcnt({35-9*b-cb})")
            mfma(vS+4*cb, CP+4+4*b, wo_reg(b, cb), None if b == 0 else vS+4*cb)
    stamp(8)
    red_publish(vS, C_S, WS_S, sB, None)
    stamp(9)
    flush_stamps(vT, vT+1, 10)
    a("s_endpgm")

    GW = sW
    gM, gCNT, gONE, gT = 4, 8, 9, 12
    gL16, gG, gH = 1, 2, 3
    gCA, gPA0, gPA1, gPW, gSO = 28, 29, 30, 31, 10
    gST = 32
    gS = 72; gP = 80; gAC = 96; gQF = 128; gCF = 192; gPV = 128
    a("L_G:")
    a(f"""v_lshlrev_b32 {v(gL16)}, 4, v0
    s_lshl_b32 {sP}, {sXCD}, 4
    s_and_b32 {sA}, {sI}, 15
    s_add_u32 {sP}, {sP}, {sA}
    s_lshl_b32 {sC}, {sP}, 2
    s_add_u32 {sC}, {sC}, {GW}
    s_lshl_b32 {sC}, {sC}, 15
    s_mul_i32 {sD}, {GW}, {32*ROW}
    v_mov_b32 {v(gCNT)}, {L_CNT}
    v_mov_b32 {v(gONE)}, 1""")
    Lz = a.label("z")
    a(f"""s_cmp_lg_u32 {GW}, 0
    s_cbranch_scc1 {Lz}
    v_lshlrev_b32 {v(gT)}, 2, v0
    v_add_u32 {v(gT)}, {L_CNT}, {v(gT)}
    v_mov_b32 {v(gT+1)}, 0
    s_mov_b64 exec, 0xffff
    ds_write_b32 {v(gT)}, {v(gT+1)}
    s_mov_b64 exec, -1
    {Lz}:""")
    if cfg.code_prefetch:
        a(f"""s_getpc_b64 s[{RCODE}:{RCODE+1}]
        L_pc:
        s_sub_u32 s{RCODE}, s{RCODE}, L_pc-L_code_begin
        s_subb_u32 s{RCODE+1}, s{RCODE+1}, 0
        s_mov_b32 s{RCODE+2}, L_code_end-L_code_begin
        s_mov_b32 s{RCODE+3}, 0x20000
        s_lshl_b32 {sA}, {sI}, 2
        s_add_u32 {sA}, {sA}, {GW}
        s_and_b32 {sA}, {sA}, 15
        s_lshl_b32 {sA}, {sA}, 10
        v_add_u32 {v(gT+3)}, {sA}, {v(gL16)}
        buffer_load_dwordx4 {v(gT+4,4)}, {v(gT+3)}, {srd(RCODE)}, 0 offen""")
    a(f"""s_waitcnt lgkmcnt(0)
    buffer_load_dword {v(gT+2)}, off, {srd(RWS)}, 0 sc1
    s_barrier""")
    stamp(1)
    Ld = a.label("dma")
    a(f"""s_mov_b32 {sA}, 0
    {Ld}:
    s_mov_b32 m0, {sD}
    s_add_u32 {sD}, {sD}, {ROW}
    buffer_load_dwordx4 {v(gL16)}, {srd(RCKV)}, {sC} offen lds
    s_add_u32 {sC}, {sC}, 1024""")
    if cfg.dma_win: a(f"s_waitcnt vmcnt({cfg.dma_win})")
    a(f"""s_add_u32 {sA}, {sA}, 1
    s_cmp_lt_u32 {sA}, 32
    s_cbranch_scc1 {Ld}""")
    stamp(2)
    masks(gM, gT)
    a(f"""v_lshrrev_b32 {v(gG)}, 4, v0
    v_and_b32 {v(gH)}, 15, v0
    s_mul_i32 {sA}, {GW}, {32*ROW}
    v_mul_u32_u24 {v(gCA)}, {ROW}, {v(gH)}
    v_lshlrev_b32 {v(gT)}, 4, {v(gG)}
    v_add3_u32 {v(gCA)}, {v(gCA)}, {v(gT)}, {sA}
    v_lshrrev_b32 {v(gT)}, 2, v0
    v_mul_u32_u24 {v(gPA0)}, {ROW}, {v(gT)}
    v_and_b32 {v(gT)}, 3, v0
    v_lshlrev_b32 {v(gT)}, 3, {v(gT)}
    s_lshl_b32 {sA}, {GW}, 8
    v_add3_u32 {v(gPA0)}, {v(gPA0)}, {v(gT)}, {sA}
    v_add_u32 {v(gPA1)}, {64*ROW}, {v(gPA0)}
    v_add_u32 {v(gPW)}, {L_QP}, {v(gL16)}
    v_add_u32 {v(gT+3)}, {L_QF}, {v(gL16)}
    s_waitcnt vmcnt(32)
    v_readfirstlane_b32 {sT[0]}, {v(gT+2)}
    s_add_u32 {sT[0]}, {sT[0]}, 1
    s_lshr_b32 {sT[1]}, {sT[0]}, 8
    s_lshr_b32 {sT[2]}, {sT[0]}, 16
    s_lshr_b32 {sT[3]}, {sT[0]}, 24
    s_mov_b32 {sK0}, {hx(f2u(128 ** -0.5))}
    s_mov_b32 {sK1}, {hx(f2u(1.4426950408889634))}""")
    lwait(C_Q, gT, gCNT, sleep=1)
    stamp(3)
    for ks in range(16):
        a(f"ds_read_b128 {v(gQF+4*ks,4)}, {v(gT+3)} offset:{1024*ks}")
        if ks == 11: a("s_waitcnt lgkmcnt(8)")
    signal(C_QC, gONE, gCNT)
    def round_scores(base):
        if cfg.mimic:
            for k in range(2):
                a(f"v_cvt_pk_bf16_f32 {v(gT+k)}, {v(base+2*k)}, {v(base+2*k+1)}")
            for k in range(2):
                a(f"v_lshlrev_b32 {v(base+2*k)}, 16, {v(gT+k)}\nv_and_b32 {v(base+2*k+1)}, 0xffff0000, {v(gT+k)}")
        for k in range(4): a(f"v_mul_f32 {v(base+k)}, {sK0}, {v(base+k)}")
        if cfg.mimic:
            for k in range(2):
                a(f"v_cvt_pk_bf16_f32 {v(gT+k)}, {v(base+2*k)}, {v(base+2*k+1)}")
            for k in range(2):
                a(f"v_lshlrev_b32 {v(base+2*k)}, 16, {v(gT+k)}\nv_and_b32 {v(base+2*k+1)}, 0xffff0000, {v(gT+k)}")
    for tile in range(2):
        a(f"s_waitcnt vmcnt({16 if tile == 0 else 0})")
        if tile == 1:
            signal(C_L, gONE, gCNT)
            stamp(4)
        for ks in range(8): a(f"ds_read_b128 {v(gCF+4*ks,4)}, {v(gCA)} offset:{tile*16*ROW+64*ks}")
        if tile == 1: round_scores(gS)
        for ks in range(16):
            a(f"s_waitcnt lgkmcnt({min(7, 15-ks)})")
            mfma(gS+4*tile, gCF+4*ks, gQF+4*ks, None if ks == 0 else gS+4*tile)
            if ks < 8: a(f"ds_read_b128 {v(gCF+4*(ks+8),4)}, {v(gCA)} offset:{tile*16*ROW+64*(ks+8)}")
    lwait(C_L, gT, gCNT)
    trs = []
    for kw in range(4):
        for t in range(8):
            for hf in range(2):
                base = gPA0 if kw < 2 else gPA1
                trs.append(f"ds_read_b64_tr_b16 {v(gPV+32*kw+4*t+2*hf,2)}, {v(base)} offset:{(kw%2)*32*ROW+hf*16*ROW+32*t}")
    tri = [0]
    def tr(n):
        for _ in range(n):
            if tri[0] < len(trs): a(trs[tri[0]]); tri[0] += 1
    tr(12)
    round_scores(gS+4)
    tr(4)
    a(f"""v_max3_f32 {v(gT)}, {v(gS)}, {v(gS+1)}, {v(gS+2)}
    v_max3_f32 {v(gT+1)}, {v(gS+3)}, {v(gS+4)}, {v(gS+5)}
    v_max3_f32 {v(gT)}, {v(gT)}, {v(gS+6)}, {v(gS+7)}
    v_max_f32 {v(gT)}, {v(gT)}, {v(gT+1)}""")
    tr(2)
    xrow("v_max_f32", gT, gT+1)
    tr(2)
    a(f"v_mul_f32 {v(gT)}, {sK1}, {v(gT)}\nv_ceil_f32 {v(gT)}, {v(gT)}")
    for k in range(8): a(f"v_fma_f32 {v(gS+k)}, {v(gS+k)}, {sK1}, -{v(gT)}")
    tr(4)
    for k in range(8):
        a(f"v_exp_f32 {v(gS+k)}, {v(gS+k)}")
        if k % 2 == 1: tr(1)
    for k in range(4): a(f"v_cvt_pk_bf16_f32 {v(gP+k)}, {v(gS+2*k)}, {v(gS+2*k+1)}")
    a(f"""s_lshl_b32 {sA}, {GW}, 10
    v_add_u32 {v(gT+2)}, {sA}, {v(gPW)}
    ds_write_b128 {v(gT+2)}, {v(gP,4)}""")
    for k in range(4): a(f"v_add_f32 {v(gS+2*k)}, {v(gS+2*k)}, {v(gS+2*k+1)}")
    a(f"""v_add_f32 {v(gS)}, {v(gS)}, {v(gS+2)}
    v_add_f32 {v(gS+4)}, {v(gS+4)}, {v(gS+6)}
    v_add_f32 {v(gT+1)}, {v(gS)}, {v(gS+4)}""")
    xrow("v_add_f32", gT+1, gT+2)
    a(f"""s_lshl_b32 {sA}, {GW}, 3
    s_add_u32 {sA}, {sA}, {L_PS}
    v_lshl_add_u32 {v(gT+2)}, {v(gH)}, 5, {sA}
    ds_write_b64 {v(gT+2)}, {v(gT,2)}""")
    signal(C_P, gONE, gCNT)
    v_ps = gT+3
    a(f"v_lshlrev_b32 {v(v_ps)}, 5, {v(gH)}\nv_add_u32 {v(v_ps)}, {L_PS}, {v(v_ps)}")
    while tri[0] < len(trs):
        tr(1)
    a(f"""v_mul_u32_u24 {v(gSO)}, {8*INB}, {v(gH)}
    v_lshl_add_u32 {v(gT+4)}, {v(gG)}, 4, {v(gSO)}
    s_lshl_b32 {sC}, {sHH}, 7
    s_lshl_b32 {sA}, {GW}, 1
    s_add_u32 {sC}, {sC}, {sA}
    s_mul_i32 {sC}, {sC}, {INB}
    s_add_u32 {sC}, {sC}, {WS_IN}
    s_lshl_b32 {sA}, {sP}, 7
    s_add_u32 {sD}, {sC}, {sA}
    s_add_u32 {sK2}, {sD}, {INB}
    s_and_b32 {sA}, {sP}, 0x60
    s_bfe_u32 {sBb}, {sP}, 0x20003
    s_add_u32 {sA}, {sA}, {sBb}
    s_and_b32 {sBb}, {sP}, 7
    s_lshl_b32 {sBb}, {sBb}, 2
    s_add_u32 {sA}, {sA}, {sBb}
    s_lshl_b32 {sA}, {sA}, 3
    s_add_u32 {sC}, {sC}, {sA}
    s_add_u32 {sC}, {sC}, 16384
    v_mul_u32_u24 {v(gT+5)}, {INB}, {v(gG)}
    v_add_u32 {v(gSO)}, {v(gSO)}, {v(gT+5)}""")
    lwait(C_P, gT, gCNT)
    stamp(5)
    a(f"ds_read_b128 {v(gST,4)}, {v(v_ps)}\nds_read_b128 {v(gST+4,4)}, {v(v_ps)} offset:16")
    for kw in range(4): a(f"ds_read_b128 {v(gP+4*kw,4)}, {v(gPW)} offset:{1024*kw}")
    MX = gT; LS = gT+1
    a(f"""s_waitcnt lgkmcnt(4)
    v_max_f32 {v(MX)}, {v(gST)}, {v(gST+2)}
    v_max3_f32 {v(MX)}, {v(MX)}, {v(gST+4)}, {v(gST+6)}""")
    for kw in range(4): a(f"v_sub_f32 {v(gST+2*kw)}, {v(MX)}, {v(gST+2*kw)}")
    for kw in range(4): a(f"v_cvt_u32_f32 {v(gST+2*kw)}, {v(gST+2*kw)}")
    for kw in range(4): a(f"v_min_u32 {v(gST+2*kw)}, 0xff, {v(gST+2*kw)}")
    a(f"s_mov_b32 {sA}, 0x800080")
    for kw in range(4): a(f"v_mul_u32_u24 {v(gT+6+kw)}, {sA}, {v(gST+2*kw)}")
    for kw in range(4):
        a(f"s_waitcnt lgkmcnt({3-kw})")
        for k in range(4): a(f"v_pk_sub_u16 {v(gP+4*kw+k)}, {v(gP+4*kw+k)}, {v(gT+6+kw)} clamp")
        for t in range(8):
            mfma(gAC+4*t, gPV+32*kw+4*t, gP+4*kw, None if kw == 0 else gAC+4*t)
            if t == 0: a(f"v_sub_u32 {v(gST+2*kw)}, 0, {v(gST+2*kw)}")
            if t == 1: a(f"v_ldexp_f32 {v(gST+2*kw+1)}, {v(gST+2*kw+1)}, {v(gST+2*kw)}")
            if t == 2 and kw == 1: a(f"v_add_f32 {v(LS)}, {v(gST+1)}, {v(gST+3)}")
            if t == 2 and kw >= 2: a(f"v_add_f32 {v(LS)}, {v(LS)}, {v(gST+2*kw+1)}")
    OB = gS
    for jj in range(2):
        for u in range(2):
            t = 4*jj + 2*u
            ob = OB + 4*u
            for k in range(4):
                tt = t + k//2; r = 2*(k % 2)
                a(f"v_cvt_pk_bf16_f32 {v(ob+k)}, {v(gAC+4*tt+r)}, {v(gAC+4*tt+r+1)}")
            a(f"buffer_store_dwordx4 {v(ob,4)}, {v(gT+4)}, {srd(RWS)}, {sD if jj == 0 else sK2} offen offset:{64*u} sc1")
    set_exec(0xffffffff, 0)
    a(f"buffer_store_dwordx2 {v(MX,2)}, {v(gSO)}, {srd(RWS)}, {sC} offen sc1\ns_mov_b64 exec, -1")
    stamp(6)
    gD = 128; gS3 = 144
    a(f"""s_lshl_b32 {sC}, {sH}, 3
    s_add_u32 {sC}, {sC}, {sJ}
    s_mul_i32 {sC}, {sC}, {INB}
    s_add_u32 {sC}, {sC}, {WS_IN}
    s_lshl_b32 {sA}, {GW}, 8
    s_add_u32 {sD}, {sC}, {sA}
    s_add_u32 {sD}, {sD}, 16384
    s_lshl_b32 {sA}, {GW}, 12
    s_add_u32 {sC}, {sC}, {sA}
    v_lshrrev_b32 {v(gT+2)}, 3, v0
    v_lshlrev_b32 {v(gT+2)}, 5, {v(gT+2)}
    s_mov_b32 {sSpin}, {cfg.spin_max}""")
    L3 = a.label("g3"); D3 = a.label("g3d")
    a(f"{L3}:")
    for k in range(2): a(f"buffer_load_dwordx4 {v(gS3+4*k,4)}, {v(gT+2)}, {srd(RWS)}, {sD} offen offset:{16*k} sc1")
    for k in range(4): a(f"buffer_load_dwordx4 {v(gD+4*k,4)}, {v(gL16)}, {srd(RWS)}, {sC} offen offset:{1024*k} sc1")
    a(f"""s_waitcnt vmcnt(0)
    v_max3_u32 {v(gT+3)}, {v(gS3)}, {v(gS3+2)}, {v(gS3+4)}
    v_max3_u32 {v(gT+4)}, {v(gS3+6)}, {v(gD+3)}, {v(gD+7)}
    v_max3_u32 {v(gT+3)}, {v(gT+3)}, {v(gD+11)}, {v(gD+15)}
    v_max_u32 {v(gT+3)}, {v(gT+3)}, {v(gT+4)}
    v_cmp_eq_u32 vcc, -1, {v(gT+3)}
    s_and_b64 exec, exec, vcc
    s_cbranch_execz {D3}
    s_sub_u32 {sSpin}, {sSpin}, 1
    s_cbranch_scc0 {L3}
    {D3}:
    s_mov_b64 exec, -1""")
    stamp(7)
    a(f"""v_max_f32 {v(MX)}, {v(gS3)}, {v(gS3+2)}
    v_max3_f32 {v(MX)}, {v(MX)}, {v(gS3+4)}, {v(gS3+6)}""")
    ror("v_max_f32", MX, 8)
    xrow("v_max_f32", MX, gT+2)
    for k in range(4): a(f"v_sub_f32 {v(gS3+2*k)}, {v(gS3+2*k)}, {v(MX)}")
    for k in range(4): a(f"v_exp_f32 {v(gS3+2*k)}, {v(gS3+2*k)}")
    for k in range(4): a(f"v_cvt_pk_bf16_f32 {v(gT+4+k)}, {v(gS3+2*k)}, {v(gS3+2*k)}")
    for k in range(4):
        afrag(gP+4*k, gT+4+k, gM)
    for k in range(4):
        mfma(gAC, gP+4*k, gD+4*k, None if k == 0 else gAC)
    a(f"v_mul_f32 {v(LS)}, {v(gS3)}, {v(gS3+1)}")
    for k in range(1, 4): a(f"v_fmac_f32 {v(LS)}, {v(gS3+2*k)}, {v(gS3+2*k+1)}")
    ror("v_add_f32", LS, 8)
    xrow("v_add_f32", LS, gT+2)
    a(f"""v_and_b32 {v(gT+2)}, 7, v0
    v_lshlrev_b32 {v(gT+2)}, 5, {v(gT+2)}
    v_bfe_u32 {v(gT+3)}, v0, 4, 1
    v_lshl_add_u32 {v(gT+2)}, {v(gT+3)}, 4, {v(gT+2)}
    v_lshrrev_b32 {v(gT+3)}, 5, v0
    v_lshl_add_u32 {v(gT+2)}, {v(gT+3)}, 8, {v(gT+2)}
    s_lshl_b32 {sA}, {GW}, 9
    s_add_u32 {sA}, {sA}, {L_P3}
    v_add_u32 {v(gT+2)}, {sA}, {v(gT+2)}
    s_lshl_b32 {sA}, {GW}, 3
    s_add_u32 {sA}, {sA}, {L_S3}
    v_mov_b32 {v(gT+3)}, {sA}""")
    set_exec(*VALIDMASK)
    a(f"""ds_write_b128 {v(gT+2)}, {v(gAC,4)}
    s_mov_b64 exec, 1
    ds_write_b64 {v(gT+3)}, {v(MX,2)}
    ds_add_u32 {v(gCNT)}, {v(gONE)} offset:{C_C}
    s_mov_b64 exec, -1""")
    stamp(8)
    Lfe = a.label("fe")
    a(f"""s_cmp_lg_u32 {GW}, 0
    s_cbranch_scc1 {Lfe}
    s_cmp_lt_u32 {sI}, 14
    s_cbranch_scc1 {Lfe}
    s_mul_i32 {sQ}, {sXCD}, 18
    s_add_u32 {sQ}, {sQ}, 31
    s_sub_u32 {sQ}, {sQ}, {sI}
    s_lshl_b32 {sA}, {sQ}, 3
    v_lshlrev_b32 {v(gT)}, 1, {v(gG)}
    buffer_load_ushort {v(gT+2)}, {v(gT)}, {srd(RX)}, {sA} offen
    buffer_load_ushort {v(gT+3)}, {v(gT)}, {srd(RB2)}, {sA} offen
    v_mul_u32_u24 {v(gT+1)}, 2304, v0
    s_lshl_b32 {sC}, {sQ}, 4
    s_add_u32 {sD}, {sC}, {WS_S}
    s_add_u32 {sC}, {sC}, {WS_Y}
    v_mov_b32 {v(gT+5)}, 0xff""")
    FB = 128
    def fgather(n, sbase, last16):
        Lr = a.label("fg"); Dr = a.label("fgd")
        a(f"""s_add_u32 {sK0}, {sbase}, 147456
        s_add_u32 {sK1}, {sbase}, {2*147456}
        s_add_u32 {sK2}, {sbase}, {3*147456}
        s_mov_b32 {sSpin}, {cfg.spin_max}""")
        if last16:
            for k in range(4): a(f"v_and_b32 {v(FB+4*(n-1)+k)}, {sT[k]}, {v(gT+5)}")
        a(f"{Lr}:")
        so = [sbase, sK0, sK1, sK2]
        for k in range(n):
            if last16 and k == n-1:
                Ls = a.label("fgs")
                a(f"""s_mov_b64 {sEX}, exec
                s_and_b64 exec, exec, 0xffff
                s_cbranch_execz {Ls}""")
            a(f"buffer_load_dwordx4 {v(FB+4*k,4)}, {v(gT+1)}, {srd(RWS)}, {so[k]} offen sc1")
            if last16 and k == n-1:
                a(f"{Ls}:\ns_mov_b64 exec, {sEX}")
        a("s_waitcnt vmcnt(0)")
        tagchk(gT+4, FB, n)
        a(f"""v_cmp_ne_u32 vcc, 0, {v(gT+4)}
        s_and_b64 exec, exec, vcc
        s_cbranch_execz {Dr}
        s_sub_u32 {sSpin}, {sSpin}, 1
        s_cbranch_scc0 {Lr}
        {Dr}:
        s_mov_b64 exec, -1""")
        for k in range(1, n):
            for hlf in range(2):
                a(f"v_pk_add_f32 {v(FB+2*hlf,2)}, {v(FB+2*hlf,2)}, {v(FB+4*k+2*hlf,2)}")
        a(f"""v_permlane32_swap_b32 {v(FB)}, {v(FB+2)}
        v_permlane32_swap_b32 {v(FB+1)}, {v(FB+3)}
        v_add_f32 {v(FB)}, {v(FB)}, {v(FB+2)}
        v_add_f32 {v(FB+1)}, {v(FB+1)}, {v(FB+3)}
        v_permlane16_swap_b32 {v(FB)}, {v(FB+1)}
        v_add_f32 {v(FB)}, {v(FB)}, {v(FB+1)}""")
        for nn in (8, 4, 2, 1): ror("v_add_f32", FB, nn)
        bf16r(FB)
    fgather(3, sC, True)
    gY = gT+6
    a(f"""v_lshlrev_b32 {v(gT+3)}, 16, {v(gT+3)}
    v_lshlrev_b32 {v(gT+2)}, 16, {v(gT+2)}
    v_add_f32 {v(gY)}, {v(FB)}, {v(gT+3)}""")
    bf16r(gY)
    a(f"""v_mul_f32 {v(gY+1)}, {hx(f2u(-1.4426950408889634))}, {v(gY)}
    v_exp_f32 {v(gY+1)}, {v(gY+1)}
    v_add_f32 {v(gY+1)}, 1.0, {v(gY+1)}
    v_rcp_f32 {v(gY+1)}, {v(gY+1)}
    v_mul_f32 {v(gY)}, {v(gY)}, {v(gY+1)}""")
    bf16r(gY)
    fgather(4, sD, False)
    a(f"v_mul_f32 {v(FB)}, {v(FB)}, {v(gY)}")
    bf16r(FB)
    a(f"""v_add_f32 {v(FB)}, {v(FB)}, {v(gT+2)}
    v_cvt_pk_bf16_f32 {v(FB)}, {v(FB)}, {v(FB)}
    s_lshl_b32 {sA}, {sQ}, 3""")
    set_exec(0x00010001, 0x00010001)
    a(f"""buffer_store_short {v(FB)}, {v(gT)}, {srd(ROUT)}, {sA} offen
    s_cmp_lg_u32 {sQ}, 0
    s_cbranch_scc1 {Lfe}
    v_mov_b32 {v(FB+1)}, {sT[0]}
    s_mov_b64 exec, 1
    buffer_store_dword {v(FB+1)}, off, {srd(RWS)}, 0 sc1
    {Lfe}:""")
    stamp(9)
    flush_stamps(gT, gT+1, 10)
    a("L_end:\ns_endpgm\nL_code_end:")
    body = a.finish()
    hdr = open('cdna_kernels/' + NAME + '.s.ref').read().split('; Override')[0]
    hdr += "; Persistent single-launch kernel: 256 workgroups (one per CU), 4 stream waves + 4 attention waves.\n"
    hdr += f"; @launch grid=(256,1,1) block=(512,1,1) lds={L_END}\n"
    tail = f""".section .rodata,"a"
.p2align 6
.amdhsa_kernel {NAME}_kernel
  .amdhsa_next_free_vgpr 256
  .amdhsa_next_free_sgpr 102
  .amdhsa_accum_offset 256
  .amdhsa_group_segment_fixed_size 0
  .amdhsa_kernarg_size 112
  .amdhsa_user_sgpr_count 2
  .amdhsa_user_sgpr_kernarg_segment_ptr 1
  .amdhsa_system_sgpr_workgroup_id_x 1
.end_amdhsa_kernel
"""
    return hdr + body + tail, a.nnop

if __name__ == "__main__":
    cfg = Cfg()
    out = None
    for arg in sys.argv[1:]:
        if '=' in arg:
            k, val = arg.split('=')
            setattr(cfg, k, int(val))
        else: out = arg
    txt, nn = gen(cfg)
    open(out or f'cdna_kernels/{NAME}.s', 'w').write(txt)
    print("nops inserted:", nn, file=sys.stderr)
```

```python
import sys, struct
from asmlib import Asm
NAME = "recurrent_scan__compressed_kv_cla__dense_activation_gelu__decode"

def f2u(x): return struct.unpack('<I', struct.pack('<f', x))[0]
def hx(x): return f"0x{x & 0xffffffff:08x}"

class Cfg:
    stamps = 0
    mimic = 1
    spin_max = 20000
    lspin_max = 400000
    code_prefetch = 1
    dma_win = 12
    s_win = 10
    prio = 1
    h1_sleep0 = 2; h1_sleep = 1
    q_sleep = 2
    h3_sleep0 = 4; h3_sleep = 2
    h4_sleep0 = 2; h4_sleep = 1
    f_sleep0 = 6; f_sleep = 1
    gate_y = 0; gate_x = 0
    nt = 0; x_rev = 0; y_n1 = 3; y_w1 = -1; frow = 32; dbg = 0; uk_delay = 0; st_sleep = 2; y_sleep = 4; fl_sleep = 2; yrow = 16
    amp_role = -1; amp_k = 0; amp_b = 127

WS_Q = 0x1000; WS_H1 = 0x11000; WS_H4 = 0x21000; WS_ST = 0x31000; WS_S = 0x41000; WS_Y = 0x89000
WS_FL = 0xC0000; WS_IN = 0x100000; INB = 32768
WS_TS = 0x600000; WS_SIZE = 0x700000
ROW = 1056
L_QF = 135168; L_RED = 135168
L_XN = 153600; L_QP = 156160; L_HP = 160256; L_PS = 162304
L_QV = 163328; L_S3 = 163584; L_CNT = 163648; L_END = 163712
L_P3 = 0; L_CP = 4096; L_RS = 8192
C_A, C_L, C_X, C_I, C_Q, C_QC, C_P, C_PUB, C_C, C_D, C_S, C_H, C_Y, C_F, C_W, C_M = [4*k for k in range(16)]
sE1, sB, sW, sXCD, sI, sH, sJ = 's1', 's2', 's3', 's4', 's5', 's6', 's7'
def srd(n): return f"s[{n}:{n+3}]"
RX, RWS, RWQ, RWUK, RWUV, RWO, RW1, RW2, RB1, RCKV, RB2, ROUT, RCODE = [8+4*k for k in range(13)]
sT = ['s60','s61','s62','s63']
sHH, sP, sU, sQ = 's64','s65','s66','s67'
sA, sBb, sC, sD, sSpin, sTmp = 's68','s69','s70','s71','s72','s73'
sK0, sK1, sK2, sK3 = 's74','s75','s76','s77'
sEX = 's[78:79]'
STAMP0 = 80
VALIDMASK = (0x00ff00ff, 0xff00ff00)

def v(n, k=1): return f"v{n}" if k == 1 else f"v[{n}:{n+k-1}]"

def gen(cfg):
    a = Asm()
    def stamp(k):
        if cfg.stamps: a(f"s_memrealtime s[{STAMP0+2*k}:{STAMP0+2*k+1}]")
    def flush_stamps(vt, vo, n):
        if not cfg.stamps: return
        if cfg.amp_role >= 0:
            L = a.label("amp"); D = a.label("ampd")
            a(f"""s_waitcnt lgkmcnt(0)
            s_cmp_lg_u32 {sB}, {cfg.amp_b}
            s_cbranch_scc1 {D}
            s_cmp_lg_u32 {sW}, {cfg.amp_role}
            s_cbranch_scc1 {D}
            s_sub_u32 {sA}, s{STAMP0+2*cfg.amp_k}, s{STAMP0}
            s_mul_i32 {sA}, {sA}, 10
            s_min_u32 {sA}, {sA}, 100000
            {L}:
            s_memrealtime s[{STAMP0+20}:{STAMP0+21}]
            s_waitcnt lgkmcnt(0)
            s_sub_u32 {sC}, s{STAMP0+20}, s{STAMP0+18}
            s_cmp_lt_u32 {sC}, {sA}
            s_cbranch_scc1 {L}
            {D}:""")
            return
        a("s_mov_b64 exec, -1\ns_waitcnt lgkmcnt(0)")
        a(f"v_mov_b32 {v(vt)}, 0")
        for k in range(n): a(f"v_writelane_b32 {v(vt)}, s{STAMP0+2*k}, {k}")
        a(f"""s_lshl_b32 {sA}, {sB}, 3
        s_add_u32 {sA}, {sA}, {sW}
        s_lshl_b32 {sA}, {sA}, 6
        s_add_u32 {sA}, {sA}, {WS_TS}
        v_lshlrev_b32 {v(vo)}, 2, v0
        s_mov_b64 exec, 0xffff
        buffer_store_dword {v(vt)}, {v(vo)}, {srd(RWS)}, {sA} offen""")
    def set_exec(lo, hi):
        a(f"s_mov_b32 exec_lo, {hx(lo)}\ns_mov_b32 exec_hi, {hx(hi)}")
    def signal(cnt, vone, vcnt):
        a(f"s_mov_b64 exec, 1\nds_add_u32 {v(vcnt)}, {v(vone)} offset:{cnt}\ns_mov_b64 exec, -1")
    def lwait(cnt, vt, vcnt, sleep=0):
        L = a.label("lw"); D = a.label("lwd")
        a(f"""s_mov_b32 {sSpin}, {cfg.lspin_max}
        {L}:
        ds_read_b32 {v(vt)}, {v(vcnt)} offset:{cnt}
        s_waitcnt lgkmcnt(0)
        v_readfirstlane_b32 {sTmp}, {v(vt)}
        s_cmp_ge_u32 {sTmp}, 4
        s_cbranch_scc1 {D}""")
        if sleep: a(f"s_sleep {sleep}")
        a(f"""s_sub_u32 {sSpin}, {sSpin}, 1
        s_cbranch_scc0 {L}
        {D}:""")
    def poll(loads, check, sleep0, sleep, cmp):
        L = a.label("pl"); D = a.label("pld")
        a(f"s_mov_b32 {sSpin}, {cfg.spin_max}")
        if sleep0: a(f"s_sleep {sleep0}")
        a(f"{L}:")
        loads()
        a("s_waitcnt vmcnt(0)")
        check()
        a(f"""{cmp}
        s_and_b64 exec, exec, vcc
        s_cbranch_execz {D}""")
        if sleep: a(f"s_sleep {sleep}")
        a(f"""s_sub_u32 {sSpin}, {sSpin}, 1
        s_cbranch_scc0 {L}
        {D}:
        s_mov_b64 exec, -1""")
    def xrow(op, r, t):
        a(f"""v_mov_b32 {v(t)}, {v(r)}
        v_permlane16_swap_b32 {v(r)}, {v(t)}
        {op} {v(r)}, {v(r)}, {v(t)}
        v_mov_b32 {v(t)}, {v(r)}
        v_permlane32_swap_b32 {v(r)}, {v(t)}
        {op} {v(r)}, {v(r)}, {v(t)}""")
    def dpp(op, r, ctl):
        a(f"{op}_dpp {v(r)}, {v(r)}, {v(r)} {ctl} row_mask:0xf bank_mask:0xf")
    def ror(op, r, n): dpp(op, r, f"row_ror:{n}")
    def allsum(r, t):
        for n in (8, 4, 2, 1): ror("v_add_f32", r, n)
        xrow("v_add_f32", r, t)
    def bf16r(r):
        a(f"v_cvt_pk_bf16_f32 {v(r)}, {v(r)}, {v(r)}\nv_and_b32 {v(r)}, 0xffff0000, {v(r)}")
    def mfma(d, A, B, c=None):
        a(f"v_mfma_f32_16x16x32_bf16 {v(d,4)}, {v(A,4)}, {v(B,4)}, {'0' if c is None else v(c,4)}")
    def masks(vM, vt):
        a(f"""v_and_b32 {v(vt)}, 1, v0
        v_mov_b32 {v(vt+1)}, 0xffff
        v_lshlrev_b32 {v(vt)}, 4, {v(vt)}
        v_lshlrev_b32 {v(vt)}, {v(vt)}, {v(vt+1)}
        v_bfe_u32 {v(vt+1)}, v0, 1, 2""")
        for r in range(4):
            a(f"""v_cmp_eq_u32 vcc, {r}, {v(vt+1)}
            v_cndmask_b32 {v(vM+r)}, 0, {v(vt)}, vcc""")
    def afrag(dst, dup, vM):
        for r in range(4): a(f"v_and_b32 {v(dst+r)}, {v(dup)}, {v(vM+r)}")
    def tagchk(acc, base, n):
        first = True
        for gidx in range(n):
            for k in range(4):
                if first:
                    a(f"v_xor_b32 {v(acc)}, {sT[k]}, {v(base)}"); first = False
                else:
                    a(f"v_bitop3_b32 {v(acc)}, {v(acc)}, {v(base+4*gidx+k)}, {sT[k]} bitop3:0xf6")
        a(f"v_and_b32 {v(acc)}, 0xff, {v(acc)}")
    def tagxor(acc, base, n):
        for gidx in range(n):
            for k in range(4): a(f"v_xor_b32 {v(base+4*gidx+k)}, {sT[k]}, {v(base+4*gidx+k)}")
        a(f"v_or_b32 {v(acc)}, {v(base)}, {v(base+1)}")
        for k in range(2, 4*n, 2): a(f"v_or3_b32 {v(acc)}, {v(acc)}, {v(base+k)}, {v(base+k+1)}")
        a(f"v_and_b32 {v(acc)}, 0xff, {v(acc)}")
    def mktags(vsrc):
        a(f"""v_readfirstlane_b32 {sE1}, {v(vsrc)}
        s_add_u32 {sE1}, {sE1}, 1
        s_and_b32 {sT[0]}, {sE1}, 0xff
        s_bfe_u32 {sT[1]}, {sE1}, 0x80008
        s_bfe_u32 {sT[2]}, {sE1}, 0x80010
        s_lshr_b32 {sT[3]}, {sE1}, 24""")
    def prio(n):
        if cfg.prio: a(f"s_setprio {n}")
    def tree(base, n, w, counted=True):
        step = 1
        while step < n:
            for k in range(0, n, 2*step):
                if step == 1 and counted: a(f"s_waitcnt lgkmcnt({n-2-k})")
                for hlf in range(w//2):
                    a(f"v_pk_add_f32 {v(base+w*k+2*hlf,2)}, {v(base+w*k+2*hlf,2)}, {v(base+w*(k+step)+2*hlf,2)}")
            step *= 2

    a(f""".amdgcn_target "amdgcn-amd-amdhsa--gfx950"
    .text
    .globl {NAME}_kernel
    .p2align 8
    .type {NAME}_kernel,@function
    {NAME}_kernel:""")
    a("L_code_begin:")
    a(f"s_cmp_ge_u32 {sB}, 256\ns_cbranch_scc1 L_end")
    if cfg.stamps:
        for k in range(1, 10): a(f"s_mov_b32 s{STAMP0+2*k}, 0")
    stamp(0)
    ptrs = [(RX,0,1152),(RWQ,16,4718592),(RCKV,8,16777216),(RWUK,24,4194304),(RWS,104,WS_SIZE),
            (RWUV,32,4194304),(RWO,40,4718592),(RW1,56,5308416),(RW2,72,5308416),(RB1,64,9216),
            (RB2,80,1152),(ROUT,88,1152)]
    for r, off, sz in ptrs: a(f"s_load_dwordx2 s[{r}:{r+1}], s[0:1], {off}")
    vQ, vO, vL16, vM, vCNT, vONE, vDO, vRS, vT = 1, 2, 3, 4, 8, 9, 10, 11, 12
    sCQ = sJ
    a(f"""v_lshrrev_b32 v1, 6, v0
    v_and_b32 v0, 63, v0
    v_readfirstlane_b32 {sW}, v1
    v_and_b32 v2, 15, v0
    v_lshlrev_b32 v2, 2, v2
    v_add_u32 v2, {L_CNT}, v2
    v_mov_b32 v3, 0
    ds_write_b32 v2, v3""")
    for r, off, sz in ptrs: a(f"s_mov_b32 s{r+2}, {sz}\ns_mov_b32 s{r+3}, 0x20000")
    a(f"""s_and_b32 {sXCD}, {sB}, 7
    s_lshr_b32 {sI}, {sB}, 3
    s_lshr_b32 {sHH}, {sI}, 4
    s_lshl_b32 {sP}, {sXCD}, 4
    s_and_b32 {sA}, {sI}, 15
    s_add_u32 {sP}, {sP}, {sA}
    s_lshr_b32 {sH}, {sP}, 2
    s_and_b32 {sCQ}, {sP}, 3
    v_lshrrev_b32 {v(vQ)}, 3, v0
    v_and_b32 {v(vO)}, 7, v0
    v_lshlrev_b32 {v(vL16)}, 4, v0
    s_cmp_lt_u32 {sW}, 4
    s_cbranch_scc1 L_G""")
    def lane_consts():
        masks(vM, vT)
        a(f"""v_mov_b32 {v(vCNT)}, {L_CNT}
        v_mov_b32 {v(vONE)}, 1
        v_lshrrev_b32 {v(vRS)}, 5, v0
        v_bfe_u32 {v(vT)}, v0, 4, 1
        v_lshlrev_b32 {v(vT)}, 4, {v(vT)}
        v_lshl_add_u32 {v(vDO)}, {v(vO)}, 5, {v(vT)}""")
    NT = " nt" if cfg.nt else ""
    def tagbits(dst, vpos, t0):
        a(f"""v_and_b32 {v(t0)}, 3, {v(vpos)}
        v_lshlrev_b32 {v(t0)}, 3, {v(t0)}
        v_lshrrev_b32 {v(t0)}, {v(t0)}, {sE1}
        v_lshrrev_b32 {v(t0+1)}, 2, {v(vpos)}
        v_sub_u32 {v(t0+1)}, 0, {v(t0+1)}
        v_xor_b32 {v(t0)}, {v(t0)}, {v(t0+1)}""")
        for k in range(4):
            a(f"""v_bfe_u32 {v(dst+k)}, {v(t0)}, {2*k}, 1
            v_bfe_u32 {v(t0+1)}, {v(t0)}, {2*k+1}, 1
            v_lshl_or_b32 {v(dst+k)}, {v(t0+1)}, 16, {v(dst+k)}""")
    def red_publish(wv, acc, nw, vwa, cnt, lbase, wsbase, sidx, vff):
        set_exec(*VALIDMASK)
        for cb in range(nw): a(f"ds_write_b128 {v(vwa)}, {v(acc+4*cb,4)} offset:{256*cb}")
        signal(cnt, vONE, vCNT)
        Lsk = a.label("rsk")
        a(f"""s_cmp_eq_u32 {wv}, 3
        s_cbranch_scc1 {Lsk}
        s_lshl_b32 {sA}, {wv}, 10
        v_add_u32 {v(vT)}, {sA}, {v(vL16)}
        v_add_u32 {v(vT+2)}, {lbase}, {v(vT)}
        s_mul_i32 {sC}, {sidx}, 2304
        s_add_u32 {sC}, {sC}, {wsbase}""")
        lwait(cnt, vT+1, vCNT)
        a(f"v_cmp_gt_u32 vcc, 2304, {v(vT)}\ns_mov_b64 exec, vcc")
        for k in range(8): a(f"ds_read_b128 {v(acc+4*k,4)}, {v(vT+2)} offset:{2304*k}")
        tree(acc, 8, 4)
        for k in range(4): a(f"v_bfi_b32 {v(acc+k)}, {v(vff)}, {sT[k]}, {v(acc+k)}")
        a(f"""buffer_store_dwordx4 {v(acc,4)}, {v(vT)}, {srd(RWS)}, {sC} offen sc1
        s_mov_b64 exec, -1
        {Lsk}:""")

    def flagpoll(SWv, t0):
        Lsk = a.label("fp")
        a(f"""s_cmp_lg_u32 {SWv}, 0
        s_cbranch_scc1 {Lsk}
        v_lshlrev_b32 {v(t0)}, 7, v0
        s_lshl_b32 {sK2}, {sHH}, 13
        s_add_u32 {sK2}, {sK2}, {WS_FL}
        v_mov_b32 {v(t0+2)}, 4""")
        lwait(C_W, t0+1, vCNT, sleep=1) if False else None
        poll(lambda: a(f"buffer_load_dword {v(t0+1)}, {v(t0)}, {srd(RWS)}, {sK2} offen sc1"), lambda: None,
             0, cfg.fl_sleep, f"v_cmp_ne_u32 vcc, {sE1}, {v(t0+1)}")
        signal(C_F, t0+2, vCNT)
        a(f"{Lsk}:")
    SW = sK3
    vAC = 24
    vX = 32
    vE = 52; vB1 = 53; vL4 = 54; vFF = 55
    vAF = 56
    vWq = 96; vWK = 132; vG1 = 164
    vWV = 96; vWO = 128; vD = 164; vST = 196; vR = 208
    vW1 = 96; vW2 = 168; vY = 56
    a(f"""s_sub_u32 {SW}, {sW}, 4
    v_lshlrev_b32 {v(vL4)}, 2, v0
    v_mul_u32_u24 {v(vT+4)}, {9*8192}, {v(vQ)}
    v_lshl_add_u32 {v(vT+4)}, {v(vO)}, 4, {v(vT+4)}
    s_lshl_b32 {sU}, {sCQ}, 1
    s_lshr_b32 {sA}, {SW}, 1
    s_add_u32 {sU}, {sU}, {sA}
    s_mul_i32 {sA}, {sU}, {72*8192}
    s_lshl_b32 {sBb}, {sH}, 8
    s_add_u32 {sA}, {sA}, {sBb}
    s_and_b32 {sC}, {SW}, 1
    s_lshl_b32 {sC}, {sC}, 7
    s_add_u32 {sA}, {sA}, {sC}""")
    prio(3)
    a(f"""s_waitcnt lgkmcnt(0)
    s_barrier
    s_cmp_ge_u32 {sI}, 25
    s_cbranch_scc1 L_Send""")
    stamp(1)
    Lnx = a.label("nx"); Lx1 = a.label("x1")
    a(f"""buffer_load_dwordx4 {v(vX,4)}, {v(vL16)}, {srd(RX)}, 0 offen
    buffer_load_dword {v(vX+4)}, {v(vL4)}, {srd(RX)}, 0 offen offset:1024
    buffer_load_dword {v(vE)}, off, {srd(RWS)}, 0 sc1
    s_cmp_lg_u32 {sHH}, 0
    s_cbranch_scc1 {Lnx}""")
    for rb in range(9):
        a(f"buffer_load_dwordx4 {v(vWq+4*rb,4)}, {v(vT+4)}, {srd(RWQ)}, {sA} offen{NT}")
        if rb < 8: a(f"s_add_u32 {sA}, {sA}, 8192")
    lane_consts()
    a(f"s_waitcnt vmcnt(9)\ns_branch {Lx1}\n{Lnx}:")
    lane_consts()
    a(f"s_waitcnt vmcnt(0)\n{Lx1}:")
    stamp(2)
    F = 38
    mktags(vE)
    a(f"v_mov_b32 {v(vFF)}, 0xff")
    for k in range(5):
        a(f"v_lshlrev_b32 {v(F+2*k)}, 16, {v(vX+k)}\nv_and_b32 {v(F+2*k+1)}, 0xffff0000, {v(vX+k)}")
    a(f"v_add_f32 {v(vT)}, {v(F)}, {v(F+1)}\nv_add_f32 {v(vT+1)}, {v(F+2)}, {v(F+3)}")
    for k in range(4, 10): a(f"v_add_f32 {v(vT+k%2)}, {v(vT+k%2)}, {v(F+k)}")
    a(f"v_add_f32 {v(vT)}, {v(vT)}, {v(vT+1)}")
    allsum(vT, vT+1)
    a(f"""v_mul_f32 {v(vT)}, {hx(f2u(1.0/576))}, {v(vT)}
    v_cmp_gt_u32 vcc, 32, v0""")
    a(f"v_sub_f32 {v(vT+3)}, {v(F)}, {v(vT)}\nv_mul_f32 {v(vT+2)}, {v(vT+3)}, {v(vT+3)}")
    for k in range(1, 10):
        a(f"v_sub_f32 {v(vT+3)}, {v(F+k)}, {v(vT)}")
        if k >= 8: a(f"v_cndmask_b32 {v(vT+3)}, 0, {v(vT+3)}, vcc")
        a(f"v_fmac_f32 {v(vT+2)}, {v(vT+3)}, {v(vT+3)}")
    allsum(vT+2, vT+1)
    a(f"v_mul_f32 {v(vT+2)}, {hx(f2u(1.0/576))}, {v(vT+2)}")
    bf16r(vT+2); bf16r(vT)
    a(f"v_add_f32 {v(vT+2)}, {hx(f2u(1e-5))}, {v(vT+2)}")
    bf16r(vT+2)
    a(f"v_sqrt_f32 {v(vT+2)}, {v(vT+2)}")
    for k in range(10): a(f"v_sub_f32 {v(F+k)}, {v(F+k)}, {v(vT)}")
    bf16r(vT+2)
    a(f"v_rcp_f32 {v(vT+2)}, {v(vT+2)}")
    for k in range(5):
        a(f"""v_cvt_pk_bf16_f32 {v(vT+3)}, {v(F+2*k)}, {v(F+2*k+1)}
        v_lshlrev_b32 {v(F+2*k)}, 16, {v(vT+3)}
        v_and_b32 {v(F+2*k+1)}, 0xffff0000, {v(vT+3)}""")
    for k in range(10):
        a(f"v_mul_f32 {v(F+k)}, {v(F+k)}, {v(vT+2)}\nv_cvt_pk_bf16_f32 {v(F+k)}, {v(F+k)}, {v(F+k)}")
    a(f"""v_lshlrev_b32 {v(vT)}, 5, v0
    v_lshlrev_b32 {v(vT+1)}, 3, v0
    v_add_u32 {v(vT)}, {L_XN}, {v(vT)}
    v_add_u32 {v(vT+1)}, {L_XN+2048}, {v(vT+1)}
    ds_write_b128 {v(vT)}, {v(F,4)}
    ds_write_b128 {v(vT)}, {v(F+4,4)} offset:16
    ds_write_b64 {v(vT+1)}, {v(F+8,2)}
    s_cmp_lg_u32 {sHH}, 0
    s_cbranch_scc1 L_SY""")
    a(f"""s_mul_i32 {sA}, {sU}, 288
    s_add_u32 {sA}, {sA}, {L_XN}
    v_mul_u32_u24 {v(vT)}, 36, {v(vQ)}
    v_add_u32 {v(vT)}, {sA}, {v(vT)}""")
    for k in range(4): a(f"ds_read2_b32 {v(vX+2*k,2)}, {v(vT)} offset0:{2*k} offset1:{2*k+1}")
    a(f"""ds_read_b32 {v(vX+8)}, {v(vT)} offset:32
    s_lshr_b32 {sA}, {SW}, 1
    s_lshl_b32 {sA}, {sA}, 10
    s_and_b32 {sBb}, {SW}, 1
    s_lshl_b32 {sBb}, {sBb}, 8
    s_add_u32 {sA}, {sA}, {sBb}
    s_add_u32 {sA}, {sA}, {L_QP}
    v_lshl_add_u32 {v(vT)}, {v(vRS)}, 9, {v(vDO)}
    v_add_u32 {v(vT)}, {sA}, {v(vT)}
    s_lshl_b32 {sA}, {SW}, 7
    s_add_u32 {sBb}, {sA}, {L_QP}
    v_add_u32 {v(vT+1)}, {sBb}, {v(vL16)}
    s_lshl_b32 {sK0}, {sP}, 9
    s_add_u32 {sK0}, {sK0}, {sA}
    s_add_u32 {sK0}, {sK0}, {WS_H1}
    s_waitcnt lgkmcnt(0)""")
    stamp(3)
    for rb in range(9):
        afrag(vAF+4*rb, vX+rb, vM)
        a(f"s_waitcnt vmcnt({8-rb})")
        mfma(vAC, vAF+4*rb, vWq+4*rb, None if rb == 0 else vAC)
    set_exec(*VALIDMASK)
    a(f"ds_write_b128 {v(vT)}, {v(vAC,4)}")
    signal(C_A, vONE, vCNT)
    lwait(C_A, vT+6, vCNT)
    a("s_mov_b64 exec, 0xff")
    for k in range(4): a(f"ds_read_b128 {v(vG1+4*k,4)}, {v(vT+1)} offset:{512*k}")
    tree(vG1, 4, 4)
    for k in range(4): a(f"v_bfi_b32 {v(vG1+k)}, {v(vFF)}, {sT[k]}, {v(vG1+k)}")
    a(f"""buffer_store_dwordx4 {v(vG1,4)}, {v(vL16)}, {srd(RWS)}, {sK0} offen sc1""")
    signal(C_X, vONE, vCNT)
    prio(1)
    stamp(4)
    aD, aST, aP3w, aS3w, aP3r, aCPw, aCPr, aH4, aRSw = 16, 17, 18, 19, 20, 21, 22, 23, 92
    a(f"""v_and_b32 {v(vT)}, 1, {v(vQ)}
    v_lshlrev_b32 {v(vT)}, 4, {v(vT)}
    v_lshrrev_b32 {v(vT+1)}, 1, {v(vQ)}
    v_lshl_add_u32 {v(vT)}, {v(vT+1)}, 2, {v(vT)}
    v_lshlrev_b32 {v(vT)}, 13, {v(vT)}
    v_lshl_add_u32 {v(vT)}, {v(vO)}, 4, {v(vT)}
    v_mul_u32_u24 {v(vT+1)}, 1152, {v(vQ)}
    v_lshl_add_u32 {v(vT+1)}, {v(vO)}, 4, {v(vT+1)}
    s_lshl_b32 {sU}, {sCQ}, 2
    s_add_u32 {sU}, {sU}, {SW}
    s_lshl_b32 {sC}, {sU}, 18
    s_lshl_b32 {sBb}, {sH}, 8
    s_add_u32 {sC}, {sC}, {sBb}
    s_lshl_b32 {sD}, {sH}, 4
    s_add_u32 {sD}, {sD}, {sU}
    s_mul_i32 {sD}, {sD}, {8*1152}
    v_lshlrev_b32 {v(aD)}, 8, {v(vQ)}
    v_lshl_add_u32 {v(aD)}, {v(vO)}, 4, {v(aD)}
    v_and_b32 {v(vT+2)}, 3, v0
    v_lshlrev_b32 {v(aST)}, 11, {v(vT+2)}
    v_lshl_add_u32 {v(aST)}, {v(vQ)}, 8, {v(aST)}
    v_lshlrev_b32 {v(aH4)}, 9, {v(vT+2)}
    v_lshl_add_u32 {v(aH4)}, {v(vQ)}, 2, {v(aH4)}
    s_lshl_b32 {sA}, {SW}, 10
    v_lshl_add_u32 {v(aP3w)}, {v(vRS)}, 9, {v(vDO)}
    v_add_u32 {v(aP3w)}, {sA}, {v(aP3w)}
    v_add_u32 {v(aCPw)}, {L_CP}, {v(aP3w)}
    s_lshl_b32 {sA}, {SW}, 3
    s_add_u32 {sA}, {sA}, {L_S3}
    v_mov_b32 {v(aS3w)}, {sA}
    s_lshl_b32 {sA}, {SW}, 7
    v_lshl_add_u32 {v(aP3r)}, {v(vQ)}, 4, {sA}
    s_add_u32 {sA}, {sA}, {L_CP}
    v_add_u32 {v(aCPr)}, {sA}, {v(vL16)}
    s_mul_i32 {sA}, {SW}, 4608
    s_add_u32 {sA}, {sA}, {L_RS}
    v_mul_u32_u24 {v(aRSw)}, 2304, {v(vRS)}
    v_add3_u32 {v(aRSw)}, {v(aRSw)}, {v(vDO)}, {sA}""")
    assert L_P3 == 0
    vTG = 244
    tagbits(vTG, vO, vT+2)
    lwait(C_I, vAC, vCNT, sleep=1)
    stamp(5)
    for b in range(4):
        for cb in range(2):
            a(f"buffer_load_dwordx4 {v(vWV+8*b+4*cb,4)}, {v(vT)}, {srd(RWUV)}, {sC} offen offset:{128*cb}{NT}")
        if b < 3: a(f"s_add_u32 {sC}, {sC}, 8192")
    for cb in range(9):
        a(f"buffer_load_dwordx4 {v(vWO+4*cb,4)}, {v(vT+1)}, {srd(RWO)}, {sD} offen offset:{128*cb}{NT}")
    a(f"""s_lshl_b32 {sC}, {sP}, 15
    s_lshl_b32 {sA}, {SW}, 13
    s_add_u32 {sC}, {sC}, {sA}
    s_add_u32 {sC}, {sC}, {WS_IN}
    s_add_u32 {sD}, {sC}, 4096
    s_lshr_b32 {sK0}, {sH}, 4
    s_lshl_b32 {sK0}, {sK0}, 15
    s_add_u32 {sK0}, {sK0}, {sA}
    s_and_b32 {sA}, {sH}, 15
    s_lshl_b32 {sA}, {sA}, 4
    s_add_u32 {sK0}, {sK0}, {sA}
    s_add_u32 {sK0}, {sK0}, {WS_ST}
    s_lshl_b32 {sK1}, {sP}, 9
    s_lshl_b32 {sA}, {SW}, 7
    s_add_u32 {sK1}, {sK1}, {sA}
    s_add_u32 {sK1}, {sK1}, {WS_H4}
    s_lshl_b32 {sK2}, {sH}, 11
    s_lshl_b32 {sA}, {sU}, 5
    s_add_u32 {sK2}, {sK2}, {sA}
    s_add_u32 {sK2}, {sK2}, {WS_H4}""")
    S3 = vST + 4; MX = vT; LS = vT+1; vRI = 93; SX = vD
    a(f"s_mov_b32 {sQ}, 0x10001\nv_mov_b32 {v(vT+3)}, {L_S3}")
    lwait(C_PUB, vT+2, vCNT, sleep=1)
    prio(3)
    poll(lambda: a(f"buffer_load_dwordx4 {v(vST,4)}, {v(aST)}, {srd(RWS)}, {sK0} offen sc1"), lambda: None,
         0, cfg.st_sleep, f"v_cmp_ne_u32 vcc, {sE1}, {v(vST+2)}")
    stamp(6)
    a(f"v_mov_b32 {v(MX)}, {v(vST)}")
    for k in range(4):
        a(f"v_mov_b32_dpp {v(S3+k)}, {v(vST)} quad_perm:[{k},{k},{k},{k}] row_mask:0xf bank_mask:0xf")
    for n in (8, 2, 1): ror("v_max_f32", MX, n)
    xrow("v_max_f32", MX, vT+2)
    a(f"""v_sub_f32 {v(LS)}, {v(vST)}, {v(MX)}
    v_exp_f32 {v(LS)}, {v(LS)}
    v_mul_f32 {v(LS)}, {v(LS)}, {v(vST+1)}""")
    for n in (8, 2, 1): ror("v_add_f32", LS, n)
    xrow("v_add_f32", LS, vT+2)
    a(f"""s_mov_b64 exec, 1
    ds_write_b64 {v(aS3w)}, {v(MX,2)}
    ds_add_u32 {v(vCNT)}, {v(vONE)} offset:{C_M}
    s_mov_b64 exec, -1""")
    lwait(C_M, vT+2, vCNT)
    a(f"""ds_read_b128 {v(SX,4)}, {v(vT+3)}
    ds_read_b128 {v(SX+4,4)}, {v(vT+3)} offset:16
    s_waitcnt lgkmcnt(0)
    v_max_f32 {v(MX)}, {v(SX)}, {v(SX+2)}
    v_max3_f32 {v(MX)}, {v(MX)}, {v(SX+4)}, {v(SX+6)}""")
    for k in range(4): a(f"v_sub_f32 {v(S3+k)}, {v(S3+k)}, {v(MX)}")
    for k in range(4): a(f"v_sub_f32 {v(SX+2*k)}, {v(SX+2*k)}, {v(MX)}")
    for k in range(4): a(f"v_exp_f32 {v(S3+k)}, {v(S3+k)}")
    for k in range(4): a(f"v_exp_f32 {v(SX+2*k)}, {v(SX+2*k)}")
    a(f"v_mul_f32 {v(LS)}, {v(SX)}, {v(SX+1)}")
    for k in range(1, 4): a(f"v_fmac_f32 {v(LS)}, {v(SX+2*k)}, {v(SX+2*k+1)}")
    a(f"v_rcp_f32 {v(vRI)}, {v(LS)}")
    def h3loads():
        for i in range(4):
            for cb in range(2):
                a(f"buffer_load_dwordx4 {v(vD+8*i+4*cb,4)}, {v(aD)}, {srd(RWS)}, {sC if i < 2 else sD} offen offset:{(i%2)*2048+128*cb} sc1")
    def strip(k):
        for c in range(4): a(f"v_xor_b32 {v(vD+4*k+c)}, {v(vTG+c)}, {v(vD+4*k+c)}")
    def orr(k):
        if k == 0: a(f"v_or_b32 {v(vT)}, {v(vD)}, {v(vD+1)}\nv_or_b32 {v(vT+1)}, {v(vD+2)}, {v(vD+3)}")
        else:
            for c in range(2): a(f"v_or3_b32 {v(vT+c)}, {v(vT+c)}, {v(vD+4*k+2*c)}, {v(vD+4*k+2*c+1)}")
    def grp():
        a(f"v_or_b32 {v(vT)}, {v(vT)}, {v(vT+1)}\nv_and_b32 {v(vT)}, {sQ}, {v(vT)}")
        dpp("v_or_b32", vT, "quad_perm:[1,0,3,2]")
        dpp("v_or_b32", vT, "quad_perm:[2,3,0,1]")
        dpp("v_or_b32", vT, "row_half_mirror")
        a(f"v_cmp_ne_u32 vcc, 0, {v(vT)}")
    def cmb(k): mfma(vAC+4*(k%2), vAF+4*(k//2), vD+4*k, None if k < 2 else vAC+4*(k%2))
    if cfg.h3_sleep0: a(f"s_sleep {cfg.h3_sleep0}")
    h3loads()
    for k in range(4): a(f"v_cvt_pk_bf16_f32 {v(S3+k)}, {v(S3+k)}, {v(S3+k)}")
    for k in range(4): afrag(vAF+4*k, S3+k, vM)
    for k in range(8):
        a(f"s_waitcnt vmcnt({7-k})")
        strip(k)
        if k > 0: orr(k-1)
        cmb(k)
    orr(7); grp()
    Lok = a.label("h3ok"); Lre = a.label("h3re"); Lrd = a.label("h3rd")
    a(f"""s_cbranch_vccz {Lok}
    s_mov_b32 {sSpin}, {cfg.spin_max}
    s_mov_b64 exec, vcc
    {Lre}:""")
    if cfg.h3_sleep: a(f"s_sleep {cfg.h3_sleep}")
    h3loads()
    a("s_waitcnt vmcnt(0)")
    for k in range(8): strip(k)
    for k in range(8): orr(k)
    grp()
    a(f"""s_and_b64 exec, exec, vcc
    s_cbranch_execz {Lrd}
    s_sub_u32 {sSpin}, {sSpin}, 1
    s_cbranch_scc0 {Lre}
    {Lrd}:
    s_mov_b64 exec, -1""")
    for k in range(8): cmb(k)
    a(f"{Lok}:")
    stamp(7)
    set_exec(*VALIDMASK)
    a(f"""ds_write_b128 {v(aP3w)}, {v(vAC,4)}
    ds_write_b128 {v(aP3w)}, {v(vAC+4,4)} offset:256""")
    signal(C_C, vONE, vCNT)
    lwait(C_C, vT, vCNT)
    PT = vD
    for k in range(8): a(f"ds_read_b128 {v(PT+4*k,4)}, {v(aP3r)} offset:{512*k}")
    tree(PT, 8, 4)
    for b in range(4):
        a(f"v_mul_f32 {v(PT+b)}, {v(PT+b)}, {v(vRI)}\nv_cvt_pk_bf16_f32 {v(PT+b)}, {v(PT+b)}, {v(PT+b)}")
        afrag(vAF+4*b, PT+b, vM)
        if b >= 1:
            for cb in range(2): mfma(vAC+4*cb, vAF+4*(b-1), vWV+8*(b-1)+4*cb, None if b == 1 else vAC+4*cb)
    for cb in range(2): mfma(vAC+4*cb, vAF+12, vWV+24+4*cb, vAC+4*cb)
    set_exec(*VALIDMASK)
    a(f"ds_write_b128 {v(aCPw)}, {v(vAC,4)}\nds_write_b128 {v(aCPw)}, {v(vAC+4,4)} offset:256")
    signal(C_D, vONE, vCNT)
    lwait(C_D, vT, vCNT)
    a("s_mov_b64 exec, 0xff")
    for k in range(8): a(f"ds_read_b128 {v(vD+4*k,4)}, {v(aCPr)} offset:{512*k}")
    tree(vD, 8, 4)
    a(f"""buffer_store_dwordx4 {v(vD,4)}, {v(vL16)}, {srd(RWS)}, {sK1} offen sc1
    s_mov_b64 exec, -1""")
    stamp(8)
    poll(lambda: a(f"buffer_load_dword {v(vT)}, {v(aH4)}, {srd(RWS)}, {sK2} offen sc1"), lambda: None,
         cfg.h4_sleep0, cfg.h4_sleep, f"v_cmp_eq_u32 vcc, -1, {v(vT)}")
    dpp("v_add_f32", vT, "quad_perm:[1,0,3,2]")
    dpp("v_add_f32", vT, "quad_perm:[2,3,0,1]")
    a(f"v_cvt_pk_bf16_f32 {v(vT)}, {v(vT)}, {v(vT)}")
    afrag(vAF, vT, vM)
    for cb in range(9): mfma(vR+4*cb, vAF, vWO+4*cb)
    red_publish(SW, vR, 9, aRSw, C_S, L_RS, WS_S, sP, vFF)
    a("s_branch L_Send")
    a("L_SY:")
    prio(1)

    def thr():
        if cfg.s_win: a(f"s_waitcnt vmcnt({cfg.s_win})")
    aHw, aHr, aRA = 16, 17, 18
    a(f"""s_mul_i32 {sU}, {sXCD}, 9
    s_add_u32 {sU}, {sU}, {sI}
    s_sub_u32 {sU}, {sU}, 16
    s_mul_i32 {sA}, {SW}, 576
    s_add_u32 {sA}, {sA}, {L_XN}
    v_mul_u32_u24 {v(vT)}, 72, {v(vQ)}
    v_add_u32 {v(vT)}, {sA}, {v(vT)}""")
    for k in range(9): a(f"ds_read_b64 {v(vX+2*k,2)}, {v(vT)} offset:{8*k}")
    a(f"""v_mul_u32_u24 {v(vT+1)}, {18*9216}, {v(vQ)}
    v_lshl_add_u32 {v(vT+1)}, {v(vO)}, 4, {v(vT+1)}
    v_mul_u32_u24 {v(vT+2)}, 2304, {v(vQ)}
    v_lshl_add_u32 {v(vT+2)}, {v(vO)}, 4, {v(vT+2)}
    v_lshlrev_b32 {v(vT+3)}, 2, {v(vQ)}
    s_lshl_b32 {sD}, {sU}, 2
    s_add_u32 {sD}, {sD}, {SW}
    s_mul_i32 {sC}, {sD}, {16*1152}
    s_lshl_b32 {sD}, {sD}, 5
    s_lshl_b32 {sA}, {SW}, 9
    s_add_u32 {sA}, {sA}, {L_HP}
    v_lshl_add_u32 {v(aHw)}, {v(vRS)}, 8, {v(vDO)}
    v_add_u32 {v(aHw)}, {sA}, {v(aHw)}
    s_lshl_b32 {sA}, {SW}, 6
    s_add_u32 {sA}, {sA}, {L_HP}
    v_lshl_add_u32 {v(aHr)}, {v(vQ)}, 3, {sA}
    s_mul_i32 {sA}, {SW}, 4608
    s_add_u32 {sA}, {sA}, {L_RED}
    v_mul_u32_u24 {v(aRA)}, 2304, {v(vRS)}
    v_add3_u32 {v(aRA)}, {v(aRA)}, {v(vDO)}, {sA}
    s_mul_i32 {sA}, {SW}, {144*9216}
    s_lshl_b32 {sBb}, {sU}, 7
    s_add_u32 {sA}, {sA}, {sBb}""")
    lwait([C_I, C_Q, C_P][cfg.gate_y], 19, vCNT, sleep=1)
    stamp(6)
    a(f"buffer_load_dword {v(vB1)}, {v(vT+3)}, {srd(RB1)}, {sD} offen")
    W = cfg.s_win if cfg.s_win else 18
    nissued = [0]
    def issue_ffn():
        k = nissued[0]
        if k < 18:
            a(f"buffer_load_dwordx4 {v(vW1+4*k,4)}, {v(vT+1)}, {srd(RW1)}, {sA} offen{NT}")
            if k < 17: a(f"s_add_u32 {sA}, {sA}, 9216")
        elif k < 36:
            b, cb = divmod(k-18, 9)
            a(f"buffer_load_dwordx4 {v(vW2+4*(k-18),4)}, {v(vT+2)}, {srd(RW2)}, {sC} offen offset:{1152*b+128*cb}{NT}")
        else: return
        nissued[0] += 1
    for k in range(W): issue_ffn()
    for rb in range(18):
        A = vAF + 4*(rb % 2)
        afrag(A, vX+rb, vM)
        issue_ffn()
        a(f"s_waitcnt vmcnt({nissued[0]-1-rb})")
        mfma(vAC, A, vW1+4*rb, None if rb == 0 else vAC)
    while nissued[0] < 36:
        issue_ffn(); a(f"s_waitcnt vmcnt({W})")
    set_exec(*VALIDMASK)
    a(f"ds_write_b128 {v(aHw)}, {v(vAC,4)}")
    signal(C_H, vONE, vCNT)
    a(f"v_lshlrev_b32 {v(vX+16)}, 16, {v(vB1)}\nv_and_b32 {v(vX+17)}, 0xffff0000, {v(vB1)}")
    lwait(C_H, vT, vCNT)
    stamp(7)
    for k in range(8): a(f"ds_read_b64 {v(vX+2*k,2)}, {v(aHr)} offset:{256*k}")
    tree(vX, 8, 2)
    K = -2.0 * 1.4426950408889634 * 0.7978845608028654
    for b in range(2): bf16r(vX+b)
    for b in range(2): a(f"v_add_f32 {v(vX+b)}, {v(vX+b)}, {v(vX+16+b)}")
    for b in range(2): bf16r(vX+b)
    for b in range(2): a(f"v_mul_f32 {v(vX+2+b)}, {v(vX+b)}, {v(vX+b)}\nv_mov_b32 {v(vX+4+b)}, {hx(f2u(K))}")
    for b in range(2): a(f"v_fmac_f32 {v(vX+4+b)}, {hx(f2u(K*0.044715))}, {v(vX+2+b)}")
    for b in range(2): a(f"v_mul_f32 {v(vX+4+b)}, {v(vX+4+b)}, {v(vX+b)}")
    for b in range(2): a(f"v_exp_f32 {v(vX+4+b)}, {v(vX+4+b)}")
    for b in range(2): a(f"v_add_f32 {v(vX+4+b)}, 1.0, {v(vX+4+b)}")
    for b in range(2): a(f"v_rcp_f32 {v(vX+4+b)}, {v(vX+4+b)}")
    for b in range(2): a(f"v_mul_f32 {v(vX+b)}, {v(vX+b)}, {v(vX+4+b)}")
    for b in range(2): a(f"v_cvt_pk_bf16_f32 {v(vX+b)}, {v(vX+b)}, {v(vX+b)}")
    for b in range(2): afrag(vAC+4*b, vX+b, vM)
    lwait(C_QC, vT, vCNT)
    for b in range(2):
        for cb in range(9):
            a(f"s_waitcnt vmcnt({17-9*b-cb})")
            mfma(vY+4*cb, vAC+4*b, vW2+36*b+4*cb, None if b == 0 else vY+4*cb)
    stamp(8)
    red_publish(SW, vY, 9, aRA, C_Y, L_RED, WS_Y, sU, vFF)
    a("L_Send:")
    stamp(9)
    flush_stamps(vT, vT+1, 10)
    a("s_endpgm")

    GW = sW
    gT = vT
    gG, gH, gCA, gPA0, gPA1, gPW, gSO, gE = 24, 25, 26, 27, 28, 29, 30, 31
    gS = 32; gP = 40; gST = 56; gQF = 64; gAC = 64; GQ = 64; gCF = 128
    Lgy = a.label("gy"); Lgy2 = a.label("gy2")
    def dma(x0, x1, win=None):
        Ld = a.label("dma")
        a(f"""s_mov_b32 {sA}, {x0}
        {Ld}:
        s_mov_b32 m0, {sD}
        s_add_u32 {sD}, {sD}, {sU}
        buffer_load_dwordx4 {v(vL16)}, {srd(RCKV)}, {sC} offen lds
        s_add_u32 {sC}, {sC}, {sK2}""")
        if win is None: win = cfg.dma_win
        if win: a(f"s_waitcnt vmcnt({max(win, 0)})")
        a(f"""s_add_u32 {sA}, {sA}, 1
        s_cmp_lt_u32 {sA}, {x1}
        s_cbranch_scc1 {Ld}""")
    a("L_G:")
    a(f"""s_lshl_b32 {sC}, {sP}, 2
    s_add_u32 {sC}, {sC}, {GW}
    s_lshl_b32 {sC}, {sC}, 15
    s_mul_i32 {sD}, {GW}, {32*ROW}
    s_mov_b32 {sK2}, 1024
    s_mov_b32 {sU}, {ROW}""")
    if cfg.code_prefetch:
        a(f"""s_getpc_b64 s[{RCODE}:{RCODE+1}]
        L_pc:
        s_sub_u32 s{RCODE}, s{RCODE}, L_pc-L_code_begin
        s_subb_u32 s{RCODE+1}, s{RCODE+1}, 0
        s_mov_b32 s{RCODE+2}, L_code_end-L_code_begin
        s_mov_b32 s{RCODE+3}, 0x20000
        s_lshl_b32 {sA}, {sI}, 2
        s_add_u32 {sA}, {sA}, {GW}
        s_and_b32 {sA}, {sA}, 15
        s_lshl_b32 {sA}, {sA}, 10
        v_add_u32 {v(gT+3)}, {sA}, {v(vL16)}
        buffer_load_dwordx4 {v(gP,4)}, {v(gT+3)}, {srd(RCODE)}, 0 offen""")
    a(f"""s_waitcnt lgkmcnt(0)
    s_barrier
    buffer_load_dword {v(gE)}, off, {srd(RWS)}, 0 sc1
    s_cmp_lg_u32 {sHH}, 0
    s_cbranch_scc1 {Lgy}""")
    gWK = 128; gX = 160; H1 = 176; gA = 184
    if cfg.uk_delay: a("s_waitcnt vmcnt(0)")
    a(f"""v_and_b32 {v(gT+5)}, 15, v0
    v_lshlrev_b32 {v(gT+5)}, 13, {v(gT+5)}
    v_lshrrev_b32 {v(gT+6)}, 4, v0
    v_lshl_add_u32 {v(gT+5)}, {v(gT+6)}, 4, {v(gT+5)}
    s_lshl_b32 {sK0}, {sCQ}, 2
    s_add_u32 {sK0}, {sK0}, {GW}
    s_lshl_b32 {sK0}, {sK0}, 18
    s_lshl_b32 {sBb}, {sH}, 8
    s_add_u32 {sK0}, {sK0}, {sBb}
    s_add_u32 {sK1}, {sK0}, {16*8192}""")
    for tt in range(2):
        for ks in range(4):
            a(f"buffer_load_dwordx4 {v(gWK+16*tt+4*ks,4)}, {v(gT+5)}, {srd(RWUK)}, {sK0 if tt == 0 else sK1} offen offset:{64*ks}")
    for k in range(4): a(f"v_mov_b32 {v(gA+k)}, -1")
    a(f"""s_lshl_b32 {sA}, {sP}, 2
    s_add_u32 {sA}, {sA}, {GW}
    s_lshl_b32 {sA}, {sA}, 7
    s_add_u32 {sK1}, {sA}, {WS_H4}
    s_lshr_b32 {sK0}, {sA}, 1
    s_add_u32 {sK0}, {sK0}, {WS_Q}
    s_mov_b64 exec, 0xff
    buffer_store_dwordx4 {v(gA,4)}, {v(vL16)}, {srd(RWS)}, {sK1} offen sc1
    s_mov_b64 exec, -1
    s_lshl_b32 {sK1}, {sH}, 11
    s_add_u32 {sK1}, {sK1}, {WS_H1}
    v_mov_b32 {v(vCNT)}, {L_CNT}
    v_and_b32 {v(gT+2)}, 31, v0
    v_lshlrev_b32 {v(gT+2)}, 3, {v(gT+2)}
    v_add_u32 {v(gT+2)}, {L_QV}, {v(gT+2)}
    v_lshlrev_b32 {v(gT+3)}, 4, {v(gT+6)}
    v_add_u32 {v(gT+4)}, {L_QV}, {v(gT+3)}
    v_and_b32 {v(gT+5)}, 1, v0
    v_lshlrev_b32 {v(gT+3)}, 3, {v(gT+6)}
    v_lshl_add_u32 {v(gT+3)}, {v(gT+5)}, 5, {v(gT+3)}
    v_cmp_eq_u32 {sEX}, 1, {v(gT+5)}
    v_mov_b32 {v(vONE)}, 1
    s_lshl_b32 {sQ}, {sP}, 7
    s_add_u32 {sQ}, {sQ}, {WS_FL}
    s_waitcnt vmcnt(9)""")
    mktags(gE)
    if cfg.x_rev: a(f"""s_add_u32 {sC}, {sC}, {31*1024}
    s_mov_b32 {sK2}, -1024""")
    if cfg.dbg == 1:
        a("s_waitcnt vmcnt(1)"); stamp(6)
    lwait(C_X, gT+6, vCNT)
    prio(3)
    def h1loads():
        for t in range(2): a(f"buffer_load_dwordx4 {v(H1+4*t,4)}, {v(vL16)}, {srd(RWS)}, {sK1} offen offset:{1024*t} sc1")
    poll(h1loads, lambda: tagxor(gT+1, H1, 2), cfg.h1_sleep0, cfg.h1_sleep, f"v_cmp_ne_u32 vcc, 0, {v(gT+1)}")
    stamp(1)
    tree(H1, 2, 4, counted=False)
    for k in range(4): a(f"v_mov_b32 {v(H1+4+k)}, {v(H1+k)}")
    for k in range(4): a(f"v_permlane32_swap_b32 {v(H1+k)}, {v(H1+4+k)}")
    for hlf in range(2): a(f"v_pk_add_f32 {v(H1+2*hlf,2)}, {v(H1+2*hlf,2)}, {v(H1+4+2*hlf,2)}")
    a(f"""v_cvt_pk_bf16_f32 {v(H1)}, {v(H1)}, {v(H1+1)}
    v_cvt_pk_bf16_f32 {v(H1+1)}, {v(H1+2)}, {v(H1+3)}
    ds_write_b64 {v(gT+2)}, {v(H1,2)}""")
    for ks in range(4): a(f"ds_read_b128 {v(gX+4*ks,4)}, {v(gT+4)} offset:{64*ks}")
    for ks in range(4):
        a(f"s_waitcnt lgkmcnt({3-ks})")
        for tt in range(2): mfma(gA+4*tt, gWK+16*tt+4*ks, gX+4*ks, None if ks == 0 else gA+4*tt)
    for k in range(4): a(f"v_cndmask_b32 {v(gA+k)}, {v(gA+k)}, {v(gA+4+k)}, {sEX}")
    for k in range(2): a(f"v_cvt_pk_bf16_f32 {v(gA+k)}, {v(gA+2*k)}, {v(gA+2*k+1)}")
    set_exec(0x00030003, 0x00030003)
    Lfl = a.label("fl")
    a(f"""buffer_store_dwordx2 {v(gA,2)}, {v(gT+3)}, {srd(RWS)}, {sK0} offen sc1
    v_mov_b32 {v(gA+4)}, {sE1}
    s_mov_b64 exec, 1
    s_waitcnt vmcnt(0)
    ds_add_rtn_u32 {v(gT)}, {v(vCNT)}, {v(vONE)} offset:{C_W}
    s_waitcnt lgkmcnt(0)
    v_readfirstlane_b32 {sTmp}, {v(gT)}
    s_cmp_lg_u32 {sTmp}, 3
    s_cbranch_scc1 {Lfl}
    buffer_store_dword {v(gA+4)}, off, {srd(RWS)}, {sQ} sc1
    {Lfl}:
    s_mov_b64 exec, -1""")
    stamp(8)
    prio(2)
    dma(0, 10)
    a(f"s_branch {Lgy2}")
    a(f"{Lgy}:")
    prio(2)
    stamp(1)
    if cfg.y_n1: dma(0, cfg.y_n1, cfg.y_w1)
    stamp(8)
    if cfg.y_n1 < 10: dma(cfg.y_n1, 10)
    a(f"v_mov_b32 {v(vCNT)}, {L_CNT}\nv_mov_b32 {v(vONE)}, 1")
    a(f"{Lgy2}:")
    lane_consts()
    a(f"""v_lshrrev_b32 {v(gG)}, 4, v0
    v_and_b32 {v(gH)}, 15, v0
    v_lshlrev_b32 {v(gSO)}, 10, {v(gH)}
    v_lshl_add_u32 {v(gSO)}, {v(gG)}, 4, {v(gSO)}
    s_lshl_b32 {sK3}, {sHH}, 14
    s_lshl_b32 {sBb}, {GW}, 8
    s_add_u32 {sK3}, {sK3}, {sBb}
    s_add_u32 {sK3}, {sK3}, {WS_Q}
    s_mul_i32 {sA}, {GW}, {32*ROW}
    v_mul_u32_u24 {v(gCA)}, {ROW}, {v(gH)}
    v_lshlrev_b32 {v(gT)}, 4, {v(gG)}
    v_add3_u32 {v(gCA)}, {v(gCA)}, {v(gT)}, {sA}
    v_lshrrev_b32 {v(gT)}, 2, v0
    v_mul_u32_u24 {v(gPA0)}, {ROW}, {v(gT)}
    v_and_b32 {v(gT)}, 3, v0
    v_lshlrev_b32 {v(gT)}, 3, {v(gT)}
    s_lshl_b32 {sA}, {GW}, 8
    v_add3_u32 {v(gPA0)}, {v(gPA0)}, {v(gT)}, {sA}
    v_add_u32 {v(gPA1)}, {64*ROW}, {v(gPA0)}
    v_add_u32 {v(gPW)}, {L_QP}, {v(vL16)}
    v_add_u32 {v(gT+3)}, {L_QF}, {v(vL16)}
    s_mov_b32 {sK0}, {hx(f2u(128 ** -0.5))}
    s_mov_b32 {sK1}, {hx(f2u(1.4426950408889634))}""")
    def flload():
        a(f"""s_mov_b64 exec, 0xffff
        buffer_load_dword {v(gT+7)}, {v(gT+6)}, {srd(RWS)}, {sQ} offen sc1
        s_mov_b64 exec, -1""")
    a(f"""v_lshlrev_b32 {v(gT+6)}, 7, v0
    s_lshl_b32 {sQ}, {sHH}, 2
    s_add_u32 {sQ}, {sQ}, {GW}
    s_lshl_b32 {sQ}, {sQ}, 11
    s_add_u32 {sQ}, {sQ}, {WS_FL}""")
    dma(10, cfg.frow)
    flload()
    if cfg.frow < 32: dma(cfg.frow, 32)
    stamp(2)
    mktags(gE)
    a(f"""v_lshrrev_b32 {v(gT+5)}, 3, {v(gH)}
    v_lshl_add_u32 {v(gT+5)}, {v(gT+5)}, 2, {v(gG)}
    s_lshl_b32 {sD}, {GW}, 12
    s_add_u32 {sD}, {sD}, {L_QF}""")
    tagbits(gT+8, gT+5, gT)
    prio(3)
    Lf = a.label("fw"); Lfd = a.label("fwd")
    a(f"""s_mov_b32 {sSpin}, {cfg.spin_max}
    s_waitcnt vmcnt({32-cfg.frow})
    {Lf}:
    s_mov_b64 exec, 0xffff
    v_cmp_ne_u32 vcc, {sE1}, {v(gT+7)}
    s_mov_b64 exec, -1
    s_cbranch_vccz {Lfd}""")
    flload()
    a(f"""s_waitcnt vmcnt(0)
    s_sub_u32 {sSpin}, {sSpin}, 1
    s_cbranch_scc0 {Lf}
    {Lfd}:""")
    signal(C_F, vONE, vCNT)
    lwait(C_F, gT, vCNT)
    if cfg.dbg != 1: stamp(6)
    for t in range(4):
        a(f"""s_mov_b32 m0, {sD}
        s_add_u32 {sD}, {sD}, {1024-64}
        buffer_load_dwordx4 {v(gSO)}, {srd(RWS)}, {sK3} offen offset:{64*t} sc1 lds""")
    signal(C_I, vONE, vCNT)
    a("s_waitcnt vmcnt(20)")
    for ks in range(16): a(f"ds_read_b128 {v(gCF+4*ks,4)}, {v(gCA)} offset:{64*ks}")
    a("s_waitcnt vmcnt(4)")
    stamp(7)
    for ks in range(16): a(f"ds_read_b128 {v(gCF+64+4*ks,4)}, {v(gCA)} offset:{16*ROW+64*ks}")
    a("s_waitcnt vmcnt(0)")
    signal(C_Q, vONE, vCNT)
    lwait(C_Q, gT, vCNT)
    stamp(3)
    def round_scores(base, part):
        ops = []
        if cfg.mimic:
            for k in range(2): ops.append(f"v_cvt_pk_bf16_f32 {v(gT+k)}, {v(base+2*k)}, {v(base+2*k+1)}")
            for k in range(2): ops += [f"v_lshlrev_b32 {v(base+2*k)}, 16, {v(gT+k)}", f"v_and_b32 {v(base+2*k+1)}, 0xffff0000, {v(gT+k)}"]
        for k in range(4): ops.append(f"v_mul_f32 {v(base+k)}, {sK0}, {v(base+k)}")
        if cfg.mimic:
            for k in range(2): ops.append(f"v_cvt_pk_bf16_f32 {v(gT+k)}, {v(base+2*k)}, {v(base+2*k+1)}")
            for k in range(2): ops += [f"v_lshlrev_b32 {v(base+2*k)}, 16, {v(gT+k)}", f"v_and_b32 {v(base+2*k+1)}, 0xffff0000, {v(gT+k)}"]
        return ops
    def pvreg(n): return gCF + 64*(n // 16) + 4*(n % 16)
    def trs(n):
        t, kw = divmod(n, 4)
        base = gPA0 if kw < 2 else gPA1
        return [f"ds_read_b64_tr_b16 {v(pvreg(n)+2*hf,2)}, {v(base)} offset:{(kw%2)*32*ROW+hf*16*ROW+32*t}" for hf in range(2)]
    q = []
    def ds(name, text): a(text); q.append(name)
    def dswait(name): a(f"s_waitcnt lgkmcnt({min(15, len(q)-1-q.index(name))})")
    def sig(c):
        a("s_mov_b64 exec, 1"); ds('sig', f"ds_add_u32 {v(vCNT)}, {v(vONE)} offset:{c}"); a("s_mov_b64 exec, -1")
    for ks in range(10): ds(('Q', ks), f"ds_read_b128 {v(gQF+4*ks,4)}, {v(gT+3)} offset:{1024*ks}")
    rs0 = round_scores(gS, 0)
    for m in range(32):
        tile, ks = divmod(m, 16)
        if tile == 0: dswait(('Q', ks))
        mfma(gS+4*tile, gCF+64*tile+4*ks, gQF+4*ks, None if ks == 0 else gS+4*tile)
        if tile == 0 and ks + 10 < 16:
            ds(('Q', ks+10), f"ds_read_b128 {v(gQF+4*(ks+10),4)}, {v(gT+3)} offset:{1024*(ks+10)}")
            if ks + 10 == 15: sig(C_QC)
        if m >= 7:
            for tx in trs(m-7): ds('tr', tx)
        if m >= 19 and rs0:
            a(rs0.pop(0))
            if rs0 and m >= 24: a(rs0.pop(0))
    for o in rs0: a(o)
    rest = []
    for n in range(25, 32): rest += trs(n)
    def tr(n):
        for _ in range(n):
            if rest: a(rest.pop(0))
    tr(8)
    for k, o in enumerate(round_scores(gS+4, 1)):
        a(o)
        if k % 2: tr(1)
    a(f"""v_max3_f32 {v(gT)}, {v(gS)}, {v(gS+1)}, {v(gS+2)}
    v_max3_f32 {v(gT+1)}, {v(gS+3)}, {v(gS+4)}, {v(gS+5)}
    v_max3_f32 {v(gT)}, {v(gT)}, {v(gS+6)}, {v(gS+7)}
    v_max_f32 {v(gT)}, {v(gT)}, {v(gT+1)}""")
    tr(4)
    xrow("v_max_f32", gT, gT+1)
    a(f"v_mul_f32 {v(gT)}, {sK1}, {v(gT)}\nv_ceil_f32 {v(gT)}, {v(gT)}")
    for k in range(8):
        a(f"v_fma_f32 {v(gS+k)}, {v(gS+k)}, {sK1}, -{v(gT)}")
        if k % 2: tr(1)
    for k in range(8):
        a(f"v_exp_f32 {v(gS+k)}, {v(gS+k)}")
        tr(1)
    a(f"""s_lshl_b32 {sA}, {GW}, 10
    v_add_u32 {v(gT+2)}, {sA}, {v(gPW)}""")
    for k in range(4): a(f"v_cvt_pk_bf16_f32 {v(gP+k)}, {v(gS+2*k)}, {v(gS+2*k+1)}")
    a(f"ds_write_b128 {v(gT+2)}, {v(gP,4)}")
    for k in range(4): a(f"v_add_f32 {v(gS+2*k)}, {v(gS+2*k)}, {v(gS+2*k+1)}")
    a(f"""v_add_f32 {v(gS)}, {v(gS)}, {v(gS+2)}
    v_add_f32 {v(gS+4)}, {v(gS+4)}, {v(gS+6)}
    v_add_f32 {v(gT+1)}, {v(gS)}, {v(gS+4)}""")
    xrow("v_add_f32", gT+1, gT+2)
    a(f"""s_lshl_b32 {sA}, {GW}, 3
    s_add_u32 {sA}, {sA}, {L_PS}
    v_lshl_add_u32 {v(gT+2)}, {v(gH)}, 5, {sA}
    ds_write_b64 {v(gT+2)}, {v(gT,2)}""")
    signal(C_P, vONE, vCNT)
    tr(64)
    v_ps = gT+4; gOA = gCA
    a(f"""v_lshlrev_b32 {v(v_ps)}, 5, {v(gH)}
    v_add_u32 {v(v_ps)}, {L_PS}, {v(v_ps)}
    v_and_b32 {v(gOA)}, 7, {v(gH)}
    v_lshlrev_b32 {v(gOA)}, 17, {v(gOA)}
    v_lshl_add_u32 {v(gOA)}, {v(gG)}, 4, {v(gOA)}
    v_lshrrev_b32 {v(gT+5)}, 3, {v(gH)}
    v_lshl_add_u32 {v(gOA)}, {v(gT+5)}, 6, {v(gOA)}
    s_lshl_b32 {sD}, {sHH}, 6
    s_add_u32 {sD}, {sD}, {GW}
    s_lshl_b32 {sD}, {sD}, 15
    s_lshl_b32 {sA}, {sP}, 8
    s_add_u32 {sD}, {sD}, {sA}
    s_add_u32 {sD}, {sD}, {WS_IN}
    s_add_u32 {sK2}, {sD}, {32*INB}
    s_lshl_b32 {sC}, {sHH}, 15
    s_add_u32 {sC}, {sC}, {sA}
    s_add_u32 {sC}, {sC}, {WS_ST}
    v_lshlrev_b32 {v(gSO)}, 4, {v(gH)}""")
    lwait(C_P, gT+5, vCNT)
    stamp(4)
    a(f"ds_read_b128 {v(gST,4)}, {v(v_ps)}\nds_read_b128 {v(gST+4,4)}, {v(v_ps)} offset:16")
    for kw in range(4): a(f"ds_read_b128 {v(gP+4*kw,4)}, {v(gPW)} offset:{1024*kw}")
    MX = gT; LS = gT+1; KD = gT+4
    a(f"""v_mov_b32 {v(gT+2)}, {sE1}
    v_mov_b32 {v(gT+3)}, {sE1}
    s_mov_b32 {sA}, 0x800080
    s_mov_b32 {sK0}, 0x07060302
    s_mov_b32 {sK1}, 0x10001
    s_waitcnt lgkmcnt(4)
    v_max_f32 {v(MX)}, {v(gST)}, {v(gST+2)}
    v_max3_f32 {v(MX)}, {v(MX)}, {v(gST+4)}, {v(gST+6)}""")
    for kw in range(4): a(f"v_sub_f32 {v(gST+2*kw)}, {v(MX)}, {v(gST+2*kw)}")
    for kw in range(4): a(f"v_cvt_u32_f32 {v(gST+2*kw)}, {v(gST+2*kw)}")
    for kw in range(4): a(f"v_min_u32 {v(gST+2*kw)}, 0xff, {v(gST+2*kw)}")
    for kw in range(4): a(f"v_mul_u32_u24 {v(KD+kw)}, {sA}, {v(gST+2*kw)}")
    def pv(t, kw): mfma(gAC+4*t, pvreg(4*t+kw), gP+4*kw, None if kw == 0 else gAC+4*t)
    for kw in range(4):
        a(f"s_waitcnt lgkmcnt({3-kw})")
        for k in range(4): a(f"v_pk_sub_u16 {v(gP+4*kw+k)}, {v(gP+4*kw+k)}, {v(KD+kw)} clamp")
        pv(0, kw); pv(1, kw)
    OB = gS; TB = 96
    def line_ops(ln):
        ops = []
        for k in range(16): ops.append(f"v_add_u32 {v(gAC+16*ln+k)}, 0x10000, {v(gAC+16*ln+k)}")
        for k in range(8): ops.append(f"v_perm_b32 {v(OB+k)}, {v(gAC+16*ln+2*k+1)}, {v(gAC+16*ln+2*k)}, {sK0}")
        for k in range(4): ops.append(f"v_mov_b32 {v(TB+k)}, {v(OB+k)}")
        for k in range(4): ops.append(f"v_mov_b32_dpp {v(OB+k)}, {v(OB+4+k)} row_ror:8 row_mask:0xf bank_mask:0xc")
        for k in range(4): ops.append(f"v_mov_b32_dpp {v(OB+4+k)}, {v(TB+k)} row_ror:8 row_mask:0xf bank_mask:0x3")
        for k in range(8): ops.append(f"v_bfi_b32 {v(OB+k)}, {sK1}, {v(gT+8+k%4)}, {v(OB+k)}")
        ops.append(f"buffer_store_dwordx4 {v(OB,4)}, {v(gOA)}, {srd(RWS)}, {sD} offen offset:{128*ln} sc1")
        ops.append(f"buffer_store_dwordx4 {v(OB+4,4)}, {v(gOA)}, {srd(RWS)}, {sK2} offen offset:{128*ln} sc1")
        return ops
    fill = []
    for kw in range(4):
        fill += [f"v_sub_u32 {v(gST+2*kw)}, 0, {v(gST+2*kw)}", f"v_ldexp_f32 {v(gST+2*kw+1)}, {v(gST+2*kw+1)}, {v(gST+2*kw)}"]
    fill += [f"v_add_f32 {v(LS)}, {v(gST+1)}, {v(gST+3)}", f"v_add_f32 {v(gST+5)}, {v(gST+5)}, {v(gST+7)}", f"v_add_f32 {v(LS)}, {v(LS)}, {v(gST+5)}"]
    Lst = a.label("st")
    fill.append(f"""s_cmp_lg_u32 {GW}, 3
    s_cbranch_scc1 {Lst}
    s_mov_b64 exec, 0xffff
    buffer_store_dwordx4 {v(MX,4)}, {v(gSO)}, {srd(RWS)}, {sC} offen sc1
    s_mov_b64 exec, -1
    {Lst}:""")
    for t in range(2, 8):
        for kw in range(4):
            pv(t, kw)
            if t == 4 and kw == 1: fill += line_ops(0)
            for _ in range(3):
                if fill: a(fill.pop(0))
    for o in fill: a(o)
    for o in line_ops(1): a(o)
    signal(C_PUB, vONE, vCNT)
    stamp(5)
    Lfe = a.label("fe"); Lf1 = a.label("f1")
    gC2 = gT+9
    a(f"""s_cmp_lg_u32 {sHH}, 0
    s_cbranch_scc1 {Lfe}
    s_mov_b32 {sQ}, {sP}
    s_cmp_eq_u32 {GW}, 0
    s_cbranch_scc1 {Lf1}
    s_cmp_lg_u32 {GW}, 1
    s_cbranch_scc1 {Lfe}
    s_cmp_ge_u32 {sI}, 2
    s_cbranch_scc1 {Lfe}
    s_lshl_b32 {sQ}, {sXCD}, 1
    s_add_u32 {sQ}, {sQ}, {sI}
    s_add_u32 {sQ}, {sQ}, 128
    {Lf1}:
    s_setprio 0
    s_lshl_b32 {sA}, {sQ}, 3
    v_lshlrev_b32 {v(gC2)}, 1, {v(gG)}
    buffer_load_ushort {v(gT+2)}, {v(gC2)}, {srd(RX)}, {sA} offen
    buffer_load_ushort {v(gT+3)}, {v(gC2)}, {srd(RB2)}, {sA} offen
    v_mul_u32_u24 {v(gT+1)}, 2304, v0
    s_lshl_b32 {sC}, {sQ}, 4
    s_add_u32 {sD}, {sC}, {WS_S}
    s_add_u32 {sC}, {sC}, {WS_Y}
    s_add_u32 {sK0}, {sD}, 147456
    s_add_u32 {sK1}, {sC}, 147456""")
    FB = 128; FY = 136
    def fred(B_):
        for hlf in range(2): a(f"v_pk_add_f32 {v(B_+2*hlf,2)}, {v(B_+2*hlf,2)}, {v(B_+4+2*hlf,2)}")
        a(f"""v_permlane32_swap_b32 {v(B_)}, {v(B_+2)}
        v_permlane32_swap_b32 {v(B_+1)}, {v(B_+3)}
        v_add_f32 {v(B_)}, {v(B_)}, {v(B_+2)}
        v_add_f32 {v(B_+1)}, {v(B_+1)}, {v(B_+3)}
        v_permlane16_swap_b32 {v(B_)}, {v(B_+1)}
        v_add_f32 {v(B_)}, {v(B_)}, {v(B_+1)}""")
        for nn in (8, 4, 2, 1): ror("v_add_f32", B_, nn)
        bf16r(B_)
    def yloads():
        Ls = a.label("fgs")
        for k in range(4): a(f"v_mov_b32 {v(FY+4+k)}, {sT[k]}")
        a(f"""buffer_load_dwordx4 {v(FY,4)}, {v(gT+1)}, {srd(RWS)}, {sC} offen sc1
        s_mov_b64 {sEX}, exec
        s_and_b64 exec, exec, 0xff
        s_cbranch_execz {Ls}
        buffer_load_dwordx4 {v(FY+4,4)}, {v(gT+1)}, {srd(RWS)}, {sK1} offen sc1
        {Ls}:
        s_mov_b64 exec, {sEX}""")
    lwait(C_C, gT+4, vCNT, sleep=1)
    poll(yloads, lambda: tagxor(gT+4, FY, 2), 0, cfg.y_sleep, f"v_cmp_ne_u32 vcc, 0, {v(gT+4)}")
    fred(FY)
    gY = gT+6
    a(f"""v_lshlrev_b32 {v(gT+3)}, 16, {v(gT+3)}
    v_lshlrev_b32 {v(gT+2)}, 16, {v(gT+2)}
    v_add_f32 {v(gY)}, {v(FY)}, {v(gT+3)}""")
    bf16r(gY)
    a(f"""v_mul_f32 {v(gY+1)}, {hx(f2u(-1.4426950408889634))}, {v(gY)}
    v_exp_f32 {v(gY+1)}, {v(gY+1)}
    v_add_f32 {v(gY+1)}, 1.0, {v(gY+1)}
    v_rcp_f32 {v(gY+1)}, {v(gY+1)}
    v_mul_f32 {v(gY)}, {v(gY)}, {v(gY+1)}""")
    bf16r(gY)
    lwait(C_S, gT+4, vCNT)
    prio(3)
    def sloads():
        for k, so in enumerate((sD, sK0)):
            a(f"buffer_load_dwordx4 {v(FB+4*k,4)}, {v(gT+1)}, {srd(RWS)}, {so} offen sc1")
    poll(sloads, lambda: tagxor(gT+4, FB, 2), cfg.f_sleep0, cfg.f_sleep, f"v_cmp_ne_u32 vcc, 0, {v(gT+4)}")
    fred(FB)
    a(f"v_mul_f32 {v(FB)}, {v(FB)}, {v(gY)}")
    bf16r(FB)
    a(f"""v_add_f32 {v(FB)}, {v(FB)}, {v(gT+2)}
    v_cvt_pk_bf16_f32 {v(FB)}, {v(FB)}, {v(FB)}
    s_lshl_b32 {sA}, {sQ}, 3""")
    set_exec(0x00010001, 0x00010001)
    a(f"""buffer_store_short {v(FB)}, {v(gC2)}, {srd(ROUT)}, {sA} offen
    s_cmp_lg_u32 {sQ}, 0
    s_cbranch_scc1 {Lfe}
    v_mov_b32 {v(FB+1)}, {sE1}
    s_mov_b64 exec, 1
    buffer_store_dword {v(FB+1)}, off, {srd(RWS)}, 0 sc1
    {Lfe}:""")
    stamp(9)
    flush_stamps(gT, gT+1, 10)
    a("L_end:\ns_endpgm\nL_code_end:")
    body = a.finish()
    hdr = open('cdna_kernels/' + NAME + '.s.ref').read().split('; Override')[0]
    hdr += "; Persistent single-launch kernel: 256 workgroups (one per CU), 4 projection/FFN waves + 4 attention waves.\n"
    hdr += f"; @launch grid=(256,1,1) block=(512,1,1) lds={L_END}\n"
    tail = f""".section .rodata,"a"
.p2align 6
.amdhsa_kernel {NAME}_kernel
  .amdhsa_next_free_vgpr 256
  .amdhsa_next_free_sgpr 102
  .amdhsa_accum_offset 256
  .amdhsa_group_segment_fixed_size 0
  .amdhsa_kernarg_size 112
  .amdhsa_user_sgpr_count 2
  .amdhsa_user_sgpr_kernarg_segment_ptr 1
  .amdhsa_system_sgpr_workgroup_id_x 1
.end_amdhsa_kernel
"""
    return hdr + body + tail, a.nnop

if __name__ == "__main__":
    cfg = Cfg()
    out = None
    for arg in sys.argv[1:]:
        if '=' in arg:
            k, val = arg.split('=')
            assert hasattr(cfg, k), k
            setattr(cfg, k, int(val))
        else: out = arg
    txt, nn = gen(cfg)
    open(out or f'cdna_kernels/{NAME}.s', 'w').write(txt)
    print("nops inserted:", nn, file=sys.stderr)
```
